```python
import torch

def _softmax(x, axis=-1):
    return torch.softmax(x, dim=axis)
def _gelu(x):
    return torch.nn.functional.gelu(x, approximate="tanh")
def _silu(x):
    return torch.nn.functional.silu(x)
def _sigmoid(x):
    return torch.sigmoid(x)
def _layernorm(x, axis=-1, eps=1e-5):
    m = x.mean(dim=axis, keepdim=True)
    v = x.var(dim=axis, keepdim=True, unbiased=False)
    return (x - m) / torch.sqrt(v + eps)
def _scatter_add(tgt, idx, src, axis=0):
    return tgt.clone().index_add_(axis, idx, src)
def _segment_sum(src, seg, n):
    out = torch.zeros((n,) + src.shape[1:], dtype=src.dtype)
    return out.index_add_(0, seg, src)
def _pad(x, pw):
    flat = tuple(v for pair in reversed(pw) for v in pair)
    return torch.nn.functional.pad(x, flat)

kernel_name = 'standalone__low_rank_proj_linformer__decode'

def setup_inputs():

    _w = (lambda a: (lambda t: t.to(torch.bfloat16) if t.is_floating_point() else t)(torch.as_tensor(a)))
    B, H, Sq, Skv, Dh, R = 2, 32, 1, 8192, 128, 64
    return {
        "q": _w((lambda *s: torch.randn(*s, dtype=torch.bfloat16) * 0.8)(B, H, Sq, Dh)),
        "k": _w((lambda *s: torch.randn(*s, dtype=torch.bfloat16) * 0.8)(B, H, Skv, Dh)),
        "v": _w((lambda *s: torch.randn(*s, dtype=torch.bfloat16) * 0.05)(B, H, Skv, Dh)),
        "e_proj": _w((lambda *s: torch.randn(*s, dtype=torch.bfloat16) * 0.8)(R, Skv) * (Skv ** -0.5)),
        "f_proj": _w((lambda *s: torch.randn(*s, dtype=torch.bfloat16) * 0.05)(R, Skv) * (Skv ** -0.5)),
    }

def reference(q, k, v, e_proj, f_proj):
    B, H, Sq, Dh = q.shape
    kp = torch.einsum("rn,bhnd->bhrd", e_proj, k)
    vp = torch.einsum("rn,bhnd->bhrd", f_proj, v)
    scores = torch.einsum("bhqd,bhrd->bhqr", q, kp) * (Dh ** -0.5)
    p = _softmax(scores, axis=-1)
    o = torch.einsum("bhqr,bhrd->bhqd", p, vp)
    return o
```

```python
NAME = "standalone__low_rank_proj_linformer__decode"

NREC_X = 2 * 32 * 8192 * 128 * 2
NREC_P = 64 * 8192 * 2
NREC_Q = 2 * 32 * 128 * 2
NREC_O = NREC_Q
PART = 64 * 128 * 4
WS_BYTES = 256 * PART
NUNITS = 32

def Wr(s, rr, dw): return 128 + s * 16 + rr * 4 + dw
def Er(s, m, j):   return 176 + s * 8 + m * 2 + j
def Fr(fs, t, h):  return 200 + fs * 16 + t * 2 + h
WOFF = 232
EOFF = [233, 234, 235, 236]
SELLO, SELHI = 237, 238
LANE16, LANE, C16, G = 239, 240, 241, 242

out = []
def A(x): out.append("    " + x)
def L(x): out.append(x + ":")
def C(x): out.append("    ; " + x)
def V(n, cnt=1):
    return f"v{n}" if cnt == 1 else f"v[{n}:{n+cnt-1}]"
def accidx(m, t): return (m * 8 + t) * 4
def ACC(m, t, j=None):
    return V(accidx(m, t), 4) if j is None else V(accidx(m, t) + j)
def rne(x, tmp):
    A(f"v_bfe_u32 v{tmp}, v{x}, 16, 1")
    A(f"v_add_u32 v{tmp}, 0x7fff, v{tmp}")
    A(f"v_add_u32 v{x}, v{x}, v{tmp}")
    A(f"v_and_b32 v{x}, 0xffff0000, v{x}")

def emit_loads(s):
    for rr in range(4):
        A(f"buffer_load_dwordx4 {V(Wr(s,rr,0),4)}, v{WOFF}, s[8:11], 0 offen offset:{rr*256} nt")
    for m in range(4):
        A(f"buffer_load_dwordx2 {V(Er(s,m,0),2)}, v{EOFF[m]}, s[12:15], 0 offen")
    A(f"v_add_u32 v{WOFF}, 0x8000, v{WOFF}")
    for m in range(4):
        A(f"v_add_u32 v{EOFF[m]}, 0x100, v{EOFF[m]}")

def emit_unit(u):
    s = u % 3; fs = u % 2
    A(f"s_waitcnt vmcnt({8 * (min(u + 2, NUNITS - 1) - u)})")
    for t in range(8):
        sel = SELLO if t % 2 == 0 else SELHI
        for h in range(2):
            A(f"v_perm_b32 v{Fr(fs,t,h)}, v{Wr(s,2*h+1,t//2)}, v{Wr(s,2*h,t//2)}, v{sel}")
    A("s_nop 1")
    for t in range(8):
        for m in range(4):
            c = "0" if u == 0 else ACC(m, t)
            A(f"v_mfma_f32_16x16x16_bf16 {ACC(m,t)}, {V(Er(s,m,0),2)}, {V(Fr(fs,t,0),2)}, {c}")
    if u + 3 < NUNITS:
        emit_loads(s)

def butterfly_addrs(base, bits):
    for k, b in enumerate(bits):
        A(f"v_xor_b32 v{base+k}, {1 << b}, v{LANE}")
        A(f"v_lshlrev_b32 v{base+k}, 2, v{base+k}")

def gen():
    out.append(f"""; Kernarg layout (64 bytes): q@0 k@8 v@16 e_proj@24 f_proj@32 out@40 debug@48 ws@56
; @launch grid=(256,1,1) block=(512,1,1) lds=131072
.amdgcn_target "amdgcn-amd-amdhsa--gfx950"
.text
.globl {NAME}_kernel
.p2align 8
.type {NAME}_kernel,@function
{NAME}_kernel:""")
    A("s_cmp_ge_u32 s2, 256")
    A("s_cbranch_scc1 L_exit")
    A("s_lshr_b32 s3, s2, 2")
    A("s_lshr_b32 s4, s2, 1")
    A("s_and_b32 s4, s4, 1")
    A("s_and_b32 s5, s2, 1")
    A("s_load_dwordx4 s[8:11], s[0:1], 8")
    A("s_load_dwordx4 s[12:15], s[0:1], 24")
    A("s_load_dwordx2 s[16:17], s[0:1], 0")
    A("s_load_dwordx4 s[20:23], s[0:1], 40")
    A("s_load_dwordx2 s[24:25], s[0:1], 56")
    A("v_readfirstlane_b32 s6, v0")
    A("s_waitcnt lgkmcnt(0)")
    A("s_nop 3")
    A("s_lshr_b32 s6, s6, 6")
    A("s_cmp_eq_u32 s4, 0")
    A("s_cselect_b64 s[8:9], s[8:9], s[10:11]")
    A("s_cselect_b64 s[12:13], s[12:13], s[14:15]")
    A("s_and_b32 s9, s9, 0xffff")
    A(f"s_mov_b32 s10, {NREC_X}")
    A("s_mov_b32 s11, 0x00020000")
    A("s_and_b32 s13, s13, 0xffff")
    A(f"s_mov_b32 s14, {NREC_P}")
    A("s_mov_b32 s15, 0x00020000")
    A(f"v_and_b32 v{LANE}, 63, v0")
    A(f"v_lshlrev_b32 v{LANE16}, 4, v{LANE}")
    A(f"v_and_b32 v{C16}, 15, v{LANE}")
    A(f"v_lshrrev_b32 v{G}, 4, v{LANE}")
    A("s_lshl_b32 s26, s3, 21")
    A("s_lshl_b32 s27, s5, 20")
    A("s_add_u32 s26, s26, s27")
    A("s_lshl_b32 s27, s6, 12")
    A("s_add_u32 s26, s26, s27")
    A(f"v_lshlrev_b32 v{WOFF}, 4, v{C16}")
    A(f"v_lshl_add_u32 v{WOFF}, v{G}, 10, v{WOFF}")
    A(f"v_add_u32 v{WOFF}, s26, v{WOFF}")
    A("s_lshl_b32 s27, s5, 13")
    A("s_lshl_b32 s28, s6, 5")
    A("s_add_u32 s27, s27, s28")
    A(f"v_lshlrev_b32 v{EOFF[0]}, 14, v{C16}")
    A(f"v_lshl_add_u32 v{EOFF[0]}, v{G}, 3, v{EOFF[0]}")
    A(f"v_add_u32 v{EOFF[0]}, s27, v{EOFF[0]}")
    for m in range(1, 4):
        A(f"v_add_u32 v{EOFF[m]}, {m*262144}, v{EOFF[0]}")
    A(f"v_mov_b32 v{SELLO}, 0x05040100")
    A(f"v_mov_b32 v{SELHI}, 0x07060302")
    for u in range(3):
        emit_loads(u)
    for u in range(NUNITS):
        emit_unit(u)
    A("s_nop 15")
    A("s_lshl_b32 s7, s6, 15")
    A(f"v_add_u32 v243, s7, v{LANE16}")
    def wr(sub):
        A(f"v_subrev_u32 v244, {sub}, v243")
        for q in range(32):
            A(f"ds_write_b128 v244, {ACC(q//8, q%8)} offset:{q*1024}")
    def rd_add():
        for chunk in range(2):
            qs = list(range(chunk * 16, chunk * 16 + 16))
            for i, q in enumerate(qs):
                A(f"ds_read_b128 {V(128 + 4*i, 4)}, v243 offset:{q*1024}")
            A("s_waitcnt lgkmcnt(0)")
            for i, q in enumerate(qs):
                for j in range(4):
                    A(f"v_add_f32 {ACC(q//8, q%8, j)}, {ACC(q//8, q%8, j)}, v{128 + 4*i + j}")
    A("s_cmp_lt_u32 s6, 4")
    A("s_cbranch_scc1 L_r1w")
    wr(131072)
    L("L_r1w")
    A("s_waitcnt lgkmcnt(0)")
    A("s_barrier")
    A("s_cmp_ge_u32 s6, 4")
    A("s_cbranch_scc1 L_r1r")
    rd_add()
    L("L_r1r")
    A("s_barrier")
    A("s_cmp_lt_u32 s6, 2")
    A("s_cbranch_scc1 L_r2w")
    A("s_cmp_ge_u32 s6, 4")
    A("s_cbranch_scc1 L_r2w")
    wr(65536)
    L("L_r2w")
    A("s_waitcnt lgkmcnt(0)")
    A("s_barrier")
    A("s_cmp_ge_u32 s6, 2")
    A("s_cbranch_scc1 L_r2r")
    rd_add()
    L("L_r2r")
    A("s_barrier")
    A("s_cmp_lg_u32 s6, 1")
    A("s_cbranch_scc1 L_r3w")
    wr(32768)
    L("L_r3w")
    A("s_waitcnt lgkmcnt(0)")
    A("s_barrier")
    A("s_cmp_lg_u32 s6, 0")
    A("s_cbranch_scc1 L_exit")
    rd_add()
    A("s_and_b32 s25, s25, 0xffff")
    A(f"s_mov_b32 s26, {WS_BYTES}")
    A("s_mov_b32 s27, 0x00020000")
    A("s_mov_b32 s28, s22")
    A("s_and_b32 s29, s23, 0xffff")
    A("s_mov_b32 s30, 256")
    A("s_mov_b32 s31, 0x00020000")
    A("s_mov_b32 s32, s20")
    A("s_and_b32 s33, s21, 0xffff")
    A(f"s_mov_b32 s34, {NREC_O}")
    A("s_mov_b32 s35, 0x00020000")
    A("s_mov_b32 s36, s16")
    A("s_and_b32 s37, s17, 0xffff")
    A(f"s_mov_b32 s38, {NREC_Q}")
    A("s_mov_b32 s39, 0x00020000")
    A("s_lshl_b32 s7, s2, 15")
    for i in range(8):
        A(f"v_add_u32 v{243+i}, {i*4096}, v{LANE16}")
        A(f"v_add_u32 v{243+i}, s7, v{243+i}")
    for q in range(32):
        A(f"buffer_store_dwordx4 {ACC(q//8, q%8)}, v{243 + q//4}, s[24:27], 0 offen offset:{(q%4)*1024} sc1")
    A("s_waitcnt vmcnt(0)")
    A("s_lshl_b32 s7, s3, 2")
    A("v_mov_b32 v243, 1")
    A("v_mov_b32 v244, s7")
    A("s_mov_b64 s[40:41], exec")
    A("s_mov_b64 exec, 1")
    A("buffer_atomic_add v243, v244, s[28:31], 0 offen sc0 sc1")
    A("s_waitcnt vmcnt(0)")
    A("s_mov_b64 exec, s[40:41]")
    A("v_readfirstlane_b32 s18, v243")
    A("s_nop 3")
    A("s_cmp_lg_u32 s18, 3")
    A("s_cbranch_scc1 L_exit")

    A("s_lshl_b32 s7, s3, 17")

    def load_sum_round(pa, pb, tmp, rtmp):
        for i in range(4):
            A(f"v_add_u32 v{243+i}, {pa*32768 + i*4096}, v{LANE16}")
            A(f"v_add_u32 v{243+i}, s7, v{243+i}")
            A(f"v_add_u32 v{247+i}, {pb*32768 + i*4096}, v{LANE16}")
            A(f"v_add_u32 v{247+i}, s7, v{247+i}")
        for half in range(2):
            for r in range(16):
                q = half * 16 + r
                A(f"buffer_load_dwordx4 {ACC(q//8, q%8)}, v{243 + r//4}, s[24:27], 0 offen offset:{(r%4)*1024} sc1")
            for r in range(16):
                A(f"buffer_load_dwordx4 {V(tmp + 4*r, 4)}, v{247 + r//4}, s[24:27], 0 offen offset:{(r%4)*1024} sc1")
            A("s_waitcnt vmcnt(0)")
            for r in range(16):
                q = half * 16 + r
                for j in range(4):
                    x = accidx(q//8, q%8) + j
                    A(f"v_add_f32 v{x}, v{x}, v{tmp + 4*r + j}")
                    rne(x, rtmp)
            if half == 0:
                for i in range(8):
                    A(f"v_add_u32 v{243+i}, 0x4000, v{243+i}")

    C("kp = bf16(Pk0 + Pk1), the reference's rounding of kp before the q einsum")
    load_sum_round(0, 1, 144, 251)
    C("q[8*c16 + 0..7] -> QF (fp32) per lane c16")
    QF = 196
    A(f"v_lshlrev_b32 v255, 4, v{C16}")
    A("s_lshl_b32 s40, s3, 8")
    A("v_add_u32 v255, s40, v255")
    A("buffer_load_dwordx4 v[192:195], v255, s[36:39], 0 offen")
    A("s_waitcnt vmcnt(0)")
    for k in range(4):
        A(f"v_lshlrev_b32 v{QF+2*k}, 16, v{192+k}")
        A(f"v_and_b32 v{QF+2*k+1}, 0xffff0000, v{192+k}")
    C("row scores from the rounded kp: s[16m+4g+j] = sum_d bf16(kp)[r][d] q[d], reduced over c16")
    SC = 128
    for m in range(4):
        for j in range(4):
            d = SC + m * 4 + j
            A(f"v_mul_f32 v{d}, v{accidx(m,0)+j}, v{QF}")
            for t in range(1, 8):
                A(f"v_fmac_f32 v{d}, v{accidx(m,t)+j}, v{QF+t}")
    butterfly_addrs(247, [0, 1, 2, 3])
    for k in range(4):
        for vi in range(16):
            A(f"ds_bpermute_b32 v251, v{247+k}, v{SC+vi}")
            A("s_waitcnt lgkmcnt(0)")
            A(f"v_add_f32 v{SC+vi}, v{SC+vi}, v251")
    C("lanes c16==0 write s[16m+4g+j] to LDS byte (16m+4g+j)*4")
    A(f"v_lshlrev_b32 v252, 4, v{G}")
    A(f"v_cmp_eq_u32 s[40:41], 0, v{C16}")
    A("s_nop 3")
    A("s_mov_b64 exec, s[40:41]")
    for m in range(4):
        A(f"ds_write_b128 v252, {V(SC+4*m, 4)} offset:{m*64}")
    A("s_mov_b64 exec, -1")
    A("s_waitcnt lgkmcnt(0)")
    C("lane = r: bf16 score, * bf16-rounded after (Dh**-0.5), softmax with true max, bf16 p")
    A(f"v_lshlrev_b32 v253, 2, v{LANE}")
    A("ds_read_b32 v245, v253")
    A("s_waitcnt lgkmcnt(0)")
    rne(245, 246)
    A("v_mul_f32 v245, 0x3db504f3, v245")
    A("s_nop 1")
    rne(245, 246)
    butterfly_addrs(208, [0, 1, 2, 3, 4, 5])
    A("v_mov_b32 v243, v245")
    for k in range(6):
        A(f"ds_bpermute_b32 v244, v{208+k}, v243")
        A("s_waitcnt lgkmcnt(0)")
        A("v_max_f32 v243, v243, v244")
    A("v_sub_f32 v245, v245, v243")
    A("v_mul_f32 v245, 0x3fb8aa3b, v245")
    A("v_exp_f32 v245, v245")
    A("s_nop 1")
    A("v_mov_b32 v243, v245")
    for k in range(6):
        A(f"ds_bpermute_b32 v244, v{208+k}, v243")
        A("s_waitcnt lgkmcnt(0)")
        A("v_add_f32 v243, v243, v244")
    A("v_rcp_f32 v243, v243")
    A("s_nop 1")
    A("v_mul_f32 v245, v245, v243")
    A("s_nop 1")
    rne(245, 246)
    C("p[r] -> LDS 256 + 4r, then lanes read p[16m+4g+j] -> v128+4m+j")
    A("v_add_u32 v254, 0x100, v253")
    A("ds_write_b32 v254, v245")
    A("s_waitcnt lgkmcnt(0)")
    A("v_add_u32 v252, 0x100, v252")
    for m in range(4):
        A(f"ds_read_b128 {V(128+4*m, 4)}, v252 offset:{m*64}")
    A("s_waitcnt lgkmcnt(0)")
    C("vp = bf16(Pv0 + Pv1)")
    load_sum_round(2, 3, 144, 251)
    C("o[8c16+t] partial per lane = sum_{m,j} p[16m+4g+j] vp[..][8c16+t]; reduce over g via LDS")
    for t in range(8):
        first = True
        for m in range(4):
            for j in range(4):
                x = accidx(m, t) + j; p = 128 + 4*m + j
                A(f"v_mul_f32 v{244+t}, v{p}, v{x}" if first else f"v_fmac_f32 v{244+t}, v{p}, v{x}")
                first = False
    A(f"v_lshlrev_b32 v252, 5, v{LANE}")
    A("v_add_u32 v252, 0x1000, v252")
    A("ds_write_b128 v252, v[244:247]")
    A("ds_write_b128 v252, v[248:251] offset:16")
    A("s_waitcnt lgkmcnt(0)")
    A(f"v_lshlrev_b32 v253, 5, v{C16}")
    A("v_add_u32 v253, 0x1000, v253")
    for k in range(4):
        A(f"ds_read_b128 v[{128+8*k}:{128+8*k+3}], v253 offset:{k*512}")
        A(f"ds_read_b128 v[{132+8*k}:{132+8*k+3}], v253 offset:{k*512+16}")
    A("s_waitcnt lgkmcnt(0)")
    for k in range(1, 4):
        for t in range(8):
            A(f"v_add_f32 v{128+t}, v{128+t}, v{128+8*k+t}")
    for k in range(4):
        a, b = 128 + 2*k, 129 + 2*k
        A(f"v_bfe_u32 v252, v{a}, 16, 1")
        A(f"v_add_u32 v252, 0x7fff, v252")
        A(f"v_add_u32 v{a}, v{a}, v252")
        A(f"v_lshrrev_b32 v{a}, 16, v{a}")
        A(f"v_bfe_u32 v252, v{b}, 16, 1")
        A(f"v_add_u32 v252, 0x7fff, v252")
        A(f"v_add_u32 v{b}, v{b}, v252")
        A(f"v_and_b32 v{b}, 0xffff0000, v{b}")
        A(f"v_or_b32 v{136+k}, v{a}, v{b}")
    A(f"v_lshlrev_b32 v254, 4, v{C16}")
    A("s_lshl_b32 s7, s3, 8")
    A("v_add_u32 v254, s7, v254")
    A(f"v_cmp_eq_u32 s[40:41], 0, v{G}")
    A("s_nop 3")
    A("s_mov_b64 exec, s[40:41]")
    A("buffer_store_dwordx4 v[136:139], v254, s[32:35], 0 offen")
    A("s_waitcnt vmcnt(0)")
    A("s_mov_b64 exec, -1")
    L("L_exit")
    A("s_endpgm")
    out.append(f""".section .rodata,"a"
.p2align 6
.amdhsa_kernel {NAME}_kernel
  .amdhsa_next_free_vgpr 256
  .amdhsa_next_free_sgpr 48
  .amdhsa_accum_offset 256
  .amdhsa_group_segment_fixed_size 0
  .amdhsa_kernarg_size 64
  .amdhsa_user_sgpr_count 2
  .amdhsa_user_sgpr_kernarg_segment_ptr 1
  .amdhsa_system_sgpr_workgroup_id_x 1
.end_amdhsa_kernel""")
    return "\n".join(out) + "\n"

if __name__ == "__main__":
    path = f"cdna_kernels/{NAME}.s"
    open(path, "w").write(gen())
    print("wrote", path)
```

```python
import os
NAME = "standalone__low_rank_proj_linformer__decode"
DIAG = int(os.environ.get("DIAG", "0"))
D = 4
RE = 4
NIT = 32

NREC_X = 2 * 32 * 8192 * 128 * 2
NREC_P = 64 * 8192 * 2
NREC_Q = 2 * 32 * 128 * 2
WS_USED = 256 * 32768

def ACCI(m, t): return (m * 8 + t) * 4
def Wr(s, rr): return 128 + s * 16 + rr * 4
AF = 192
FB = 200
WOFF, EV0, EV1, AADDR, SELLO, SELHI, LANE, C16, G, LANE16 = range(216, 226)
T = 226

LDSF = 65536
LDSP = 65536 + 2048
FLAG = 65536 + 4096

out = []
def A(x): out.append("    " + x)
def L(x): out.append(x + ":")
def C(x): out.append("    ; " + x)
def V(n, cnt=1): return f"v{n}" if cnt == 1 else f"v[{n}:{n+cnt-1}]"
def ACC(q, j=None):
    return V(q * 4, 4) if j is None else V(q * 4 + j)
def rne(x, tmp):
    A(f"v_bfe_u32 v{tmp}, v{x}, 16, 1")
    A(f"v_add_u32 v{tmp}, 0x7fff, v{tmp}")
    A(f"v_add_u32 v{x}, v{x}, v{tmp}")
    A(f"v_and_b32 v{x}, 0xffff0000, v{x}")

queue = []
def issue_K(u):
    s = u % D
    for rr in range(4):
        A(f"buffer_load_dwordx4 {V(Wr(s, rr), 4)}, v{WOFF}, s[8:11], 0 offen offset:{rr*256} nt")
        queue.append(("K", u))
    A(f"v_add_u32 v{WOFF}, 0x8000, v{WOFF}")
def issue_E(c):
    slot = c % RE
    for p, ev in enumerate((EV0, EV1)):
        A(f"s_add_u32 m0, s28, {slot * 16384 + p * 1024}")
        A("s_nop 0")
        A(f"buffer_load_dwordx4 v{ev}, s[12:15], s18 offen lds")
        queue.append(("E", c))
    A("s_add_u32 s18, s18, 0x100")
def vm_needed(i):
    last = max(idx for idx, op in enumerate(queue) if op in (("K", i), ("E", i)))
    return len(queue) - 1 - last

def emit_iter(i, k, issueK, issueE, vm):
    C(f"iteration slot {k}")
    A(f"s_waitcnt vmcnt({vm})")
    A("s_barrier")
    for m in range(4):
        A(f"ds_read_b64 {V(AF + 2*m, 2)}, v{AADDR} offset:{(k % RE) * 16384 + m * 4096}")
    for t in range(8):
        sel = SELLO if t % 2 == 0 else SELHI
        for h in range(2):
            A(f"v_perm_b32 v{FB + 2*t + h}, v{Wr(k % D, 2*h+1) + t//2}, v{Wr(k % D, 2*h) + t//2}, v{sel}")
    if issueK: issue_K(i + D)
    if issueE: issue_E(i + RE - 1)
    A("s_waitcnt lgkmcnt(0)")
    for t in range(8):
        for m in range(4):
            q = m * 8 + t
            A(f"v_mfma_f32_16x16x16_bf16 {ACC(q)}, {V(AF + 2*m, 2)}, {V(FB + 2*t, 2)}, {ACC(q)}")

def dpp_reduce(reg, op):
    for n in (8, 4, 2, 1):
        A("s_nop 1")
        A(f"v_{op}_f32_dpp v{reg}, v{reg}, v{reg} row_ror:{n} row_mask:0xf bank_mask:0xf")
def wave_reduce(reg, op):
    dpp_reduce(reg, op)
    A("s_nop 0")
    for r, sg in enumerate((42, 43, 48, 49)):
        A(f"v_readlane_b32 s{sg}, v{reg}, {16*r}")
    A("s_nop 1")
    A(f"v_mov_b32 v{reg}, s42")
    for sg in (43, 48, 49):
        A(f"v_{op}_f32 v{reg}, s{sg}, v{reg}")

def stamp(sreg):
    if DIAG:
        A(f"s_memtime s[{sreg}:{sreg+1}]")
        A("s_waitcnt lgkmcnt(0)")

def gen():
    out.append(f"""; Kernarg layout (64 bytes): q@0 k@8 v@16 e_proj@24 f_proj@32 out@40 debug@48 ws@56
; @launch grid=(256,1,1) block=(512,1,1) lds=131072
.amdgcn_target "amdgcn-amd-amdhsa--gfx950"
.text
.globl {NAME}_kernel
.p2align 8
.type {NAME}_kernel,@function
{NAME}_kernel:""")
    A("s_cmp_ge_u32 s2, 256")
    A("s_cbranch_scc1 L_exit")
    stamp(60)
    A("s_lshr_b32 s3, s2, 2")
    A("s_lshr_b32 s4, s2, 1")
    A("s_and_b32 s4, s4, 1")
    A("s_and_b32 s5, s2, 1")
    A("s_load_dwordx4 s[8:11], s[0:1], 8")
    A("s_load_dwordx4 s[12:15], s[0:1], 24")
    A("s_load_dwordx2 s[16:17], s[0:1], 0")
    A("s_load_dwordx4 s[20:23], s[0:1], 40")
    A("s_load_dwordx2 s[24:25], s[0:1], 56")
    A("v_readfirstlane_b32 s6, v0")
    A(f"v_and_b32 v{LANE}, 63, v0")
    A(f"v_lshlrev_b32 v{LANE16}, 4, v{LANE}")
    A(f"v_and_b32 v{C16}, 15, v{LANE}")
    A(f"v_lshrrev_b32 v{G}, 4, v{LANE}")
    A("s_lshr_b32 s6, s6, 6")
    A("s_waitcnt lgkmcnt(0)")
    A("s_cmp_eq_u32 s4, 0")
    A("s_cselect_b64 s[8:9], s[8:9], s[10:11]")
    A("s_cselect_b64 s[12:13], s[12:13], s[14:15]")
    A("s_and_b32 s9, s9, 0xffff")
    A(f"s_mov_b32 s10, {NREC_X}")
    A("s_mov_b32 s11, 0x00020000")
    A("s_and_b32 s13, s13, 0xffff")
    A(f"s_mov_b32 s14, {NREC_P}")
    A("s_mov_b32 s15, 0x00020000")
    C("K/V voffset = bh*2MiB + half*1MiB + wave*4096 + g*1024 + c16*16")
    A("s_lshl_b32 s26, s3, 21")
    A("s_lshl_b32 s27, s5, 20")
    A("s_add_u32 s26, s26, s27")
    A("s_lshl_b32 s27, s6, 12")
    A("s_add_u32 s26, s26, s27")
    A(f"v_lshlrev_b32 v{WOFF}, 4, v{C16}")
    A(f"v_lshl_add_u32 v{WOFF}, v{G}, 10, v{WOFF}")
    A(f"v_add_u32 v{WOFF}, s26, v{WOFF}")
    C("projection DMA source: piece p of wave v = rows r = 8v+4p+g, lane slot c16 <- source chunk c16 ^ (r&15)")
    for p, ev in enumerate((EV0, EV1)):
        A("s_and_b32 s26, s6, 1")
        A("s_lshl_b32 s26, s26, 3")
        A(f"s_add_u32 s26, s26, {4*p}")
        A(f"v_add_u32 v{T}, s26, v{G}")
        A(f"v_xor_b32 v{T}, v{T}, v{C16}")
        A(f"v_lshlrev_b32 v{T}, 4, v{T}")
        A(f"v_lshl_add_u32 v{ev}, v{G}, 14, v{T}")
        A("s_lshl_b32 s26, s6, 17")
        A(f"s_add_u32 s26, s26, {4 * p * 16384}")
        A("s_lshl_b32 s27, s5, 13")
        A("s_add_u32 s26, s26, s27")
        A(f"v_add_u32 v{ev}, s26, v{ev}")
    C("A-fragment LDS address: row c16 (+16m), source chunk 2v+(g>>1), byte (g&1)*8")
    A(f"v_lshrrev_b32 v{T}, 1, v{G}")
    A("s_lshl_b32 s26, s6, 1")
    A(f"v_add_u32 v{T}, s26, v{T}")
    A(f"v_xor_b32 v{T}, v{T}, v{C16}")
    A(f"v_lshlrev_b32 v{T}, 4, v{T}")
    A(f"v_lshl_add_u32 v{AADDR}, v{C16}, 8, v{T}")
    A(f"v_and_b32 v{T}, 1, v{G}")
    A(f"v_lshl_add_u32 v{AADDR}, v{T}, 3, v{AADDR}")
    A(f"v_mov_b32 v{SELLO}, 0x05040100")
    A(f"v_mov_b32 v{SELHI}, 0x07060302")
    A("s_lshl_b32 s28, s6, 11")
    A("s_mov_b32 s18, 0")
    C("---- prologue: K(0); K(1),E(0); K(2),E(1); K(3),E(2) ----")
    issue_K(0)
    for j in range(1, D):
        issue_K(j)
        if j - 1 < RE - 1: issue_E(j - 1)
    C("zero the accumulators while the first loads fly")
    for r in range(128):
        A(f"v_mov_b32 v{r}, 0")
    vm_steady = vm_needed(0)
    A(f"s_mov_b32 s19, {(NIT - D) // D}")
    L("L_loop")
    snapshot = len(queue)
    for k in range(D):
        i = k
        assert vm_needed(i) == vm_steady, (i, vm_needed(i), vm_steady)
        emit_iter(i, k, True, True, vm_steady)
    A("s_sub_u32 s19, s19, 1")
    A("s_cmp_lg_u32 s19, 0")
    A("s_cbranch_scc1 L_loop")
    trips = (NIT - D) // D
    for trip in range(1, trips):
        for k in range(D):
            i = trip * D + k
            assert vm_needed(i) == vm_steady
            for _ in range(4): queue.append(("K", i + D))
            for _ in range(2): queue.append(("E", i + RE - 1))
    for i in range(NIT - D, NIT):
        k = i % D
        ie = (i + RE - 1) < NIT
        vm = vm_needed(i)
        emit_iter(i, k, False, ie, vm)
    stamp(62)
    A("s_nop 7")
    A("s_nop 7")
    A("s_barrier")
    def round_code(keep, send, shift, xorbit, more):
        A(f"s_lshl_b32 s26, s6, {shift}")
        A(f"v_add_u32 v{T}, s26, v{LANE16}")
        A(f"s_xor_b32 s27, s6, {xorbit}")
        A(f"s_lshl_b32 s27, s27, {shift}")
        A(f"v_add_u32 v{T+1}, s27, v{LANE16}")
        for idx, q in enumerate(send):
            A(f"ds_write_b128 v{T}, {ACC(q)} offset:{idx*1024}")
        A("s_waitcnt lgkmcnt(0)")
        A("s_barrier")
        for idx in range(len(keep)):
            A(f"ds_read_b128 {V(128 + 4*idx, 4)}, v{T+1} offset:{idx*1024}")
        for idx, q in enumerate(keep):
            A(f"s_waitcnt lgkmcnt({len(keep) - 1 - idx})")
            for j in range(4):
                A(f"v_add_f32 {ACC(q, j)}, {ACC(q, j)}, v{128 + 4*idx + j}")
        if more:
            A("s_barrier")
    C("round 1: halves of 16 quads, partner wave ^ 4")
    A("s_bitcmp1_b32 s6, 2")
    A("s_cbranch_scc1 L_r1_1")
    for b2 in range(2):
        if b2: L("L_r1_1")
        keep = [16 * b2 + x for x in range(16)]; send = [16 * (1 - b2) + x for x in range(16)]
        round_code(keep, send, 14, 4, True)
        if not b2: A("s_branch L_r1_end")
    L("L_r1_end")
    C("round 2: 8 quads, partner wave ^ 2")
    A("s_lshr_b32 s29, s6, 1")
    for v in range(4):
        if v < 3:
            A(f"s_cmp_lg_u32 s29, {v}")
            A(f"s_cbranch_scc1 L_r2_{v+1}")
        b2, b1 = v >> 1, v & 1
        keep = [16 * b2 + 8 * b1 + x for x in range(8)]; send = [16 * b2 + 8 * (1 - b1) + x for x in range(8)]
        round_code(keep, send, 13, 2, True)
        A("s_branch L_r2_end")
        if v < 3: L(f"L_r2_{v+1}")
    L("L_r2_end")
    stamp(76)
    C("ws SRD (this kernel's stores/loads stay inside the first 8 MiB of d_ws)")
    A("s_mov_b32 s44, s24")
    A("s_and_b32 s45, s25, 0xffff")
    A(f"s_mov_b32 s46, {WS_USED}")
    A("s_mov_b32 s47, 0x00020000")
    C("round 3: 4 quads, partner wave ^ 1; then publish the 4 owned quads q = 4v..4v+3 of partial w")
    for v in range(8):
        if v < 7:
            A(f"s_cmp_lg_u32 s6, {v}")
            A(f"s_cbranch_scc1 L_r3_{v+1}")
        keep = [4 * v + x for x in range(4)]; send = [4 * (v ^ 1) + x for x in range(4)]
        round_code(keep, send, 12, 1, False)
        A("s_lshl_b32 s26, s2, 15")
        A(f"s_add_u32 s26, s26, {4 * v * 1024}")
        A(f"v_add_u32 v{T}, s26, v{LANE16}")
        A("s_nop 1")
        for idx, q in enumerate(keep):
            A(f"buffer_store_dwordx4 {ACC(q)}, v{T}, s[44:47], 0 offen offset:{idx*1024} sc1")
        A("s_branch L_r3_end")
        if v < 7: L(f"L_r3_{v+1}")
    L("L_r3_end")
    C("---- arrive: every storing wave drains its stores, barrier, one lane adds to the head's counter ----")
    A("s_mov_b32 s52, s22")
    A("s_and_b32 s53, s23, 0xffff")
    A("s_mov_b32 s54, 256")
    A("s_mov_b32 s55, 0x00020000")
    A("s_waitcnt vmcnt(0)")
    A("s_barrier")
    A("s_cmp_lg_u32 s6, 0")
    A("s_cbranch_scc1 L_noatom")
    A("s_lshl_b32 s26, s3, 2")
    A(f"v_mov_b32 v{T}, 1")
    A(f"v_mov_b32 v{T+1}, s26")
    A(f"v_mov_b32 v{T+2}, {FLAG}")
    A("s_mov_b64 s[40:41], exec")
    A("s_mov_b64 exec, 1")
    A(f"buffer_atomic_add v{T}, v{T+1}, s[52:55], 0 offen sc0 sc1")
    A("s_waitcnt vmcnt(0)")
    A(f"ds_write_b32 v{T+2}, v{T}")
    A("s_mov_b64 exec, s[40:41]")
    A("s_waitcnt lgkmcnt(0)")
    L("L_noatom")
    A("s_barrier")
    A(f"v_mov_b32 v{T+2}, {FLAG}")
    A(f"ds_read_b32 v{T}, v{T+2}")
    A("s_waitcnt lgkmcnt(0)")
    A("s_nop 0")
    A(f"v_readfirstlane_b32 s26, v{T}")
    stamp(64)
    A("s_nop 3")
    A("s_cmp_lg_u32 s26, 3")
    A("s_cbranch_scc1 L_done")
    C("==== finisher: partials w = 4bh + {0: K h0, 1: K h1, 2: V h0, 3: V h1} ====")
    A("s_mov_b32 s32, s20")
    A("s_and_b32 s33, s21, 0xffff")
    A(f"s_mov_b32 s34, {NREC_Q}")
    A("s_mov_b32 s35, 0x00020000")
    A("s_mov_b32 s36, s16")
    A("s_and_b32 s37, s17, 0xffff")
    A(f"s_mov_b32 s38, {NREC_Q}")
    A("s_mov_b32 s39, 0x00020000")
    for part in range(4):
        A(f"s_mov_b32 s{56+part}, {part * 32768}")
    A("s_lshl_b32 s26, s3, 17")
    A("s_lshl_b32 s27, s6, 10")
    A("s_add_u32 s26, s26, s27")
    for c in range(4):
        A(f"v_add_u32 v{T+c}, {c * 8192}, v{LANE16}")
        A(f"v_add_u32 v{T+c}, s26, v{T+c}")
    C("q[8*c16 + v]")
    A(f"v_lshlrev_b32 v{T+4}, 4, v{C16}")
    A("s_lshl_b32 s26, s3, 8")
    A("s_lshl_b32 s27, s6, 1")
    A("s_add_u32 s26, s26, s27")
    A(f"v_add_u32 v{T+4}, s26, v{T+4}")
    for part in range(4):
        for c in range(4):
            A(f"buffer_load_dwordx4 {V(part * 16 + c * 4, 4)}, v{T+c}, s[44:47], s{56+part} offen sc1")
    A(f"buffer_load_ushort v64, v{T+4}, s[36:39], 0 offen")
    A("s_waitcnt vmcnt(0)")
    C("kp = bf16(Pk0 + Pk1) ; row-score partials q[d] * kp[r][d]")
    A("v_lshlrev_b32 v64, 16, v64")
    for i in range(16):
        A(f"v_add_f32 v{i}, v{i}, v{16+i}")
        rne(i, T+5)
    for i in range(16):
        A(f"v_mul_f32 v{i}, v{i}, v64")
    C("vp = bf16(Pv0 + Pv1)")
    for i in range(16):
        A(f"v_add_f32 v{32+i}, v{32+i}, v{48+i}")
        rne(32 + i, T+5)
    for n in (8, 4, 2, 1):
        for i in range(16):
            A(f"v_add_f32_dpp v{i}, v{i}, v{i} row_ror:{n} row_mask:0xf bank_mask:0xf")
    C("lanes c16 == 0: sc[v][16c+4g+j] -> LDS")
    A("s_lshl_b32 s26, s6, 8")
    A(f"s_add_u32 s26, s26, {LDSF}")
    A(f"v_lshlrev_b32 v{T+6}, 4, v{G}")
    A(f"v_add_u32 v{T+6}, s26, v{T+6}")
    A(f"v_cmp_eq_u32 s[40:41], 0, v{C16}")
    A("s_nop 3")
    A("s_mov_b64 exec, s[40:41]")
    for c in range(4):
        A(f"ds_write_b128 v{T+6}, {V(4*c, 4)} offset:{64*c}")
    A("s_mov_b64 exec, -1")
    A("s_waitcnt lgkmcnt(0)")
    A("s_barrier")
    C("lane = r: sum the 8 wave partials in fixed order, bf16, * (Dh**-0.5), bf16")
    A(f"v_lshlrev_b32 v{T+7}, 2, v{LANE}")
    A(f"v_add_u32 v{T+7}, {LDSF}, v{T+7}")
    for wv in range(8):
        A(f"ds_read_b32 v{66+wv}, v{T+7} offset:{wv*256}")
    A("s_waitcnt lgkmcnt(0)")
    for wv in range(1, 8):
        A(f"v_add_f32 v66, v66, v{66+wv}")
    rne(66, T+5)
    A("v_mul_f32 v66, 0x3db504f3, v66")
    rne(66, T+5)
    C("softmax over the 64 rows (true max)")
    A("v_mov_b32 v67, v66")
    wave_reduce(67, "max")
    A("v_sub_f32 v66, v66, v67")
    A("v_mul_f32 v66, 0x3fb8aa3b, v66")
    A("v_exp_f32 v66, v66")
    A("s_nop 1")
    A("v_mov_b32 v67, v66")
    wave_reduce(67, "add")
    A("v_rcp_f32 v67, v67")
    A("s_nop 1")
    A("v_mul_f32 v66, v66, v67")
    rne(66, T+5)
    C("p -> this wave's LDS copy -> p[16c+4g+j] per lane")
    A("s_lshl_b32 s26, s6, 8")
    A(f"s_add_u32 s26, s26, {LDSP}")
    A(f"v_lshlrev_b32 v{T+7}, 2, v{LANE}")
    A(f"v_add_u32 v{T+7}, s26, v{T+7}")
    A(f"ds_write_b32 v{T+7}, v66")
    A(f"v_lshlrev_b32 v{T+6}, 4, v{G}")
    A(f"v_add_u32 v{T+6}, s26, v{T+6}")
    A("s_waitcnt lgkmcnt(0)")
    for c in range(4):
        A(f"ds_read_b128 {V(16 + 4*c, 4)}, v{T+6} offset:{64*c}")
    A("s_waitcnt lgkmcnt(0)")
    C("o[8c16+v] partial over this lane's 16 rows, then over g")
    A("v_mul_f32 v66, v16, v32")
    for i in range(1, 16):
        A(f"v_fmac_f32 v66, v{16+i}, v{32+i}")
    A(f"v_xor_b32 v{T}, 16, v{LANE}")
    A(f"v_lshlrev_b32 v{T}, 2, v{T}")
    A(f"v_xor_b32 v{T+1}, 32, v{LANE}")
    A(f"v_lshlrev_b32 v{T+1}, 2, v{T+1}")
    A(f"ds_bpermute_b32 v67, v{T}, v66")
    A("s_waitcnt lgkmcnt(0)")
    A("v_add_f32 v66, v66, v67")
    A(f"ds_bpermute_b32 v67, v{T+1}, v66")
    A("s_waitcnt lgkmcnt(0)")
    A("v_add_f32 v66, v66, v67")
    rne(66, T+5)
    A("v_lshrrev_b32 v66, 16, v66")
    C("lanes g == 0 store out[bh][8c16 + v]")
    A(f"v_lshlrev_b32 v{T+4}, 4, v{C16}")
    A("s_lshl_b32 s26, s3, 8")
    A("s_lshl_b32 s27, s6, 1")
    A("s_add_u32 s26, s26, s27")
    A(f"v_add_u32 v{T+4}, s26, v{T+4}")
    A(f"v_cmp_eq_u32 s[40:41], 0, v{G}")
    A("s_nop 3")
    A("s_mov_b64 exec, s[40:41]")
    A(f"buffer_store_short v66, v{T+4}, s[32:35], 0 offen")
    A("s_waitcnt vmcnt(0)")
    A("s_mov_b64 exec, -1")
    L("L_done")
    if DIAG:
        stamp(68)
        A("s_cmp_lg_u32 s6, 0")
        A("s_cbranch_scc1 L_exit")
        A("s_mov_b32 s72, s24")
        A("s_and_b32 s73, s25, 0xffff")
        A("s_mov_b32 s74, 0x20000000")
        A("s_mov_b32 s75, 0x00020000")
        A("s_lshl_b32 s26, s2, 5")
        A("s_add_u32 s26, s26, 0x1000000")
        for r, sg in enumerate((60, 62, 64, 66, 68, 76)):
            A(f"v_mov_b32 v{2+r}, s{sg}")
        A("v_mov_b32 v0, s26")
        A("buffer_store_dwordx4 v[2:5], v0, s[72:75], 0 offen")
        A("buffer_store_dwordx2 v[6:7], v0, s[72:75], 0 offen offset:16")
        A("s_waitcnt vmcnt(0)")
    L("L_exit")
    A("s_endpgm")
    out.append(f""".section .rodata,"a"
.p2align 6
.amdhsa_kernel {NAME}_kernel
  .amdhsa_next_free_vgpr 256
  .amdhsa_next_free_sgpr 96
  .amdhsa_accum_offset 256
  .amdhsa_group_segment_fixed_size 0
  .amdhsa_kernarg_size 64
  .amdhsa_user_sgpr_count 2
  .amdhsa_user_sgpr_kernarg_segment_ptr 1
  .amdhsa_system_sgpr_workgroup_id_x 1
.end_amdhsa_kernel""")
    return "\n".join(out) + "\n"

if __name__ == "__main__":
    path = os.environ.get("OUT", f"cdna_kernels/{NAME}.s")
    open(path, "w").write(gen())
    print("wrote", path)
```

```python
import os, re
NAME = "standalone__low_rank_proj_linformer__decode"
DIAG = int(os.environ.get("DIAG", "0"))
MAINONLY = int(os.environ.get("MAINONLY", "0"))
EWARM = int(os.environ.get("EWARM", "1"))
D = 4
RE = 4
U = 4
NIT = 32

NREC_X = 2 * 32 * 8192 * 128 * 2
NREC_P = 64 * 8192 * 2
NREC_Q = 2 * 32 * 128 * 2
WS_USED = 256 * 32768

ACC = 0
def Wr(s, rr): return 16 + s * 16 + rr * 4
FO = 80
AIN = 96
FIN = 128
AADDR = 160
WOFF, EV0, EV1, SELLO, SELHI, FXW, FXR, LANE, C16, G, LANE16 = range(168, 179)
T = 180
NVGPR = 200

FXB = 65536
LDSF = 65536
LDSP = 65536 + 2048
FLAG = 65536 + 4096

out = []
def A(x):
    m = re.search(r"offset:(\d+)", x)
    if m:
        lim = 4095 if x.startswith("buffer_") else 65535
        assert int(m.group(1)) <= lim, ("immediate offset out of range", x)
    out.append("    " + x)
def L(x): out.append(x + ":")
def C(x): out.append("    ; " + x)
def V(n, cnt=1): return f"v{n}" if cnt == 1 else f"v[{n}:{n+cnt-1}]"
def rne(x, tmp):
    A(f"v_bfe_u32 v{tmp}, v{x}, 16, 1")
    A(f"v_add_u32 v{tmp}, 0x7fff, v{tmp}")
    A(f"v_add_u32 v{x}, v{x}, v{tmp}")
    A(f"v_and_b32 v{x}, 0xffff0000, v{x}")

queue = []
def issue_K(u):
    s = u % D
    for rr in range(4):
        A(f"buffer_load_dwordx4 {V(Wr(s, rr), 4)}, v{WOFF}, s[8:11], 0 offen offset:{rr*256} nt")
        queue.append(("K", u))
    A(f"v_add_u32 v{WOFF}, 0x8000, v{WOFF}")
def issue_E(c):
    slot = c % RE
    for p, ev in enumerate((EV0, EV1)):
        A(f"s_add_u32 m0, s28, {slot * 16384 + p * 1024}")
        A("s_nop 0")
        A(f"buffer_load_dwordx4 v{ev}, s[12:15], s18 offen lds")
        queue.append(("E", c))
    A("s_add_u32 s18, s18, 0x100")
def vm_needed(i):
    need = [idx for idx, op in enumerate(queue) if op == ("K", i) or op == ("E", i - 1)]
    return len(queue) - 1 - max(need)

def emit_reads(i):
    slot, buf = i % RE, i % 2
    for u in range(8):
        for mm in range(2):
            A(f"ds_read_b64 {V(AIN + 4*u + 2*mm, 2)}, v{AADDR + u} offset:{slot * 16384 + mm * 4096}")
        A(f"ds_read_b128 {V(FIN + 4*u, 4)}, v{FXR} offset:{buf * 32768 + u * 4096}")
def emit_mfmas():
    for u in range(8):
        for mm in range(2):
            for tt in range(2):
                a = ACC + 4 * (2*mm + tt)
                A(f"v_mfma_f32_16x16x16_bf16 {V(a,4)}, {V(AIN + 4*u + 2*mm, 2)}, {V(FIN + 4*u + 2*tt, 2)}, {V(a,4)}")

def emit_iter(i, issueK, issueE, vm):
    k = i % D
    A(f"s_waitcnt vmcnt({vm}) lgkmcnt(0)")
    A("s_barrier")
    if i > 0: emit_reads(i - 1)
    for t in range(8):
        sel = SELLO if t % 2 == 0 else SELHI
        for h in range(2):
            A(f"v_perm_b32 v{FO + 2*t + h}, v{Wr(k, 2*h+1) + t//2}, v{Wr(k, 2*h) + t//2}, v{sel}")
    for x in range(4):
        A(f"ds_write_b128 v{FXW}, {V(FO + 4*x, 4)} offset:{(i % 2) * 32768 + x * 1024}")
    if issueK: issue_K(i + D)
    if issueE: issue_E(i + 2)
    if i > 0:
        A("s_waitcnt lgkmcnt(4)")
        emit_mfmas()

def dpp_reduce(reg, op):
    for n in (8, 4, 2, 1):
        A("s_nop 1")
        A(f"v_{op}_f32_dpp v{reg}, v{reg}, v{reg} row_ror:{n} row_mask:0xf bank_mask:0xf")
def wave_reduce(reg, op):
    dpp_reduce(reg, op)
    A("s_nop 0")
    for r, sg in enumerate((42, 43, 48, 49)):
        A(f"v_readlane_b32 s{sg}, v{reg}, {16*r}")
    A("s_nop 1")
    A(f"v_mov_b32 v{reg}, s42")
    for sg in (43, 48, 49):
        A(f"v_{op}_f32 v{reg}, s{sg}, v{reg}")
def stamp(sreg):
    if DIAG:
        A(f"s_memtime s[{sreg}:{sreg+1}]")
        A("s_waitcnt lgkmcnt(0)")
def lane_ids(lane, c16, g, lane16):
    A(f"v_mbcnt_lo_u32_b32 v{lane}, -1, 0")
    A(f"v_mbcnt_hi_u32_b32 v{lane}, -1, v{lane}")
    A(f"v_lshlrev_b32 v{lane16}, 4, v{lane}")
    A(f"v_and_b32 v{c16}, 15, v{lane}")
    A(f"v_lshrrev_b32 v{g}, 4, v{lane}")

def gen():
    out.append(f"""; Kernarg layout (64 bytes): q@0 k@8 v@16 e_proj@24 f_proj@32 out@40 debug@48 ws@56
; @launch grid=(256,1,1) block=(512,1,1) lds=131072
.amdgcn_target "amdgcn-amd-amdhsa--gfx950"
.text
.globl {NAME}_kernel
.p2align 8
.type {NAME}_kernel,@function
{NAME}_kernel:""")
    A("s_cmp_ge_u32 s2, 256")
    A("s_cbranch_scc1 L_exit")
    stamp(60)
    if DIAG:
        A("s_memrealtime s[84:85]")
        A("s_waitcnt lgkmcnt(0)")
    A("s_lshr_b32 s3, s2, 2")
    A("s_lshr_b32 s4, s2, 1")
    A("s_and_b32 s4, s4, 1")
    A("s_and_b32 s5, s2, 1")
    A("s_load_dwordx4 s[8:11], s[0:1], 8")
    A("s_load_dwordx4 s[12:15], s[0:1], 24")
    A("s_load_dwordx2 s[16:17], s[0:1], 0")
    A("s_load_dwordx4 s[20:23], s[0:1], 40")
    A("s_load_dwordx2 s[24:25], s[0:1], 56")
    A("v_readfirstlane_b32 s6, v0")
    A(f"v_and_b32 v{LANE}, 63, v0")
    A(f"v_lshlrev_b32 v{LANE16}, 4, v{LANE}")
    A(f"v_and_b32 v{C16}, 15, v{LANE}")
    A(f"v_lshrrev_b32 v{G}, 4, v{LANE}")
    A("s_lshr_b32 s6, s6, 6")
    A("s_waitcnt lgkmcnt(0)")
    A("s_cmp_eq_u32 s4, 0")
    A("s_cselect_b64 s[8:9], s[8:9], s[10:11]")
    A("s_cselect_b64 s[12:13], s[12:13], s[14:15]")
    A("s_and_b32 s9, s9, 0xffff")
    A(f"s_mov_b32 s10, {NREC_X}")
    A("s_mov_b32 s11, 0x00020000")
    A("s_and_b32 s13, s13, 0xffff")
    A(f"s_mov_b32 s14, {NREC_P}")
    A("s_mov_b32 s15, 0x00020000")
    C("K/V voffset = bh*2MiB + half*1MiB + wave*4096 + g*1024 + c16*16")
    A("s_lshl_b32 s26, s3, 21")
    A("s_lshl_b32 s27, s5, 20")
    A("s_add_u32 s26, s26, s27")
    A("s_lshl_b32 s27, s6, 12")
    A("s_add_u32 s26, s26, s27")
    A(f"v_lshlrev_b32 v{WOFF}, 4, v{C16}")
    A(f"v_lshl_add_u32 v{WOFF}, v{G}, 10, v{WOFF}")
    A(f"v_add_u32 v{WOFF}, s26, v{WOFF}")
    C("projection DMA source: piece p of wave v = rows r = 8v+4p+g, lane slot c16 <- source chunk c16 ^ (r&15)")
    for p, ev in enumerate((EV0, EV1)):
        A("s_and_b32 s26, s6, 1")
        A("s_lshl_b32 s26, s26, 3")
        A(f"s_add_u32 s26, s26, {4*p}")
        A(f"v_add_u32 v{T}, s26, v{G}")
        A(f"v_xor_b32 v{T}, v{T}, v{C16}")
        A(f"v_lshlrev_b32 v{T}, 4, v{T}")
        A(f"v_lshl_add_u32 v{ev}, v{G}, 14, v{T}")
        A("s_lshl_b32 s26, s6, 17")
        A(f"s_add_u32 s26, s26, {4 * p * 16384}")
        A("s_lshl_b32 s27, s5, 13")
        A("s_add_u32 s26, s26, s27")
        A(f"v_add_u32 v{ev}, s26, v{ev}")
    C("A-fragment LDS address per source unit u: row c16 (+16m), source chunk 2u+(g>>1), byte (g&1)*8;")
    C("this wave's m pair starts at m = 2*(v>>2)")
    A(f"v_and_b32 v{T+1}, 1, v{G}")
    A(f"v_lshlrev_b32 v{T+1}, 3, v{T+1}")
    A(f"v_lshl_add_u32 v{T+1}, v{C16}, 8, v{T+1}")
    A("s_lshr_b32 s26, s6, 2")
    A("s_lshl_b32 s26, s26, 13")
    A(f"v_add_u32 v{T+1}, s26, v{T+1}")
    A(f"v_lshrrev_b32 v{T+2}, 1, v{G}")
    for u in range(8):
        A(f"v_add_u32 v{T}, {2*u}, v{T+2}")
        A(f"v_xor_b32 v{T}, v{T}, v{C16}")
        A(f"v_lshl_add_u32 v{AADDR + u}, v{T}, 4, v{T+1}")
    C("B-fragment exchange addresses: write own unit (wave*4096), read quad tp = v&3 of every unit")
    A("s_lshl_b32 s26, s6, 12")
    A(f"s_add_u32 s26, s26, {FXB}")
    A(f"v_add_u32 v{FXW}, s26, v{LANE16}")
    A("s_and_b32 s26, s6, 3")
    A("s_lshl_b32 s26, s26, 10")
    A(f"s_add_u32 s26, s26, {FXB}")
    A(f"v_add_u32 v{FXR}, s26, v{LANE16}")
    A(f"v_mov_b32 v{SELLO}, 0x05040100")
    A(f"v_mov_b32 v{SELHI}, 0x07060302")
    A("s_lshl_b32 s28, s6, 11")
    A("s_mov_b32 s18, 0")
    if EWARM:
        C("L2 warm-up (speed only): this workgroup touches chunk (wg>>3)&31 of its projection half")
        A("s_lshr_b32 s31, s2, 3")
        A("s_and_b32 s31, s31, 31")
        A("s_lshl_b32 s31, s31, 8")
        for ev in (EV0, EV1):
            A(f"buffer_load_dwordx4 {V(T+4, 4)}, v{ev}, s[12:15], s31 offen")
    C("---- prologue ----")
    issue_K(0); issue_K(1); issue_K(2); issue_E(0); issue_K(3); issue_E(1)
    for r in range(16):
        A(f"v_mov_b32 v{ACC + r}, 0")
    C("---- iterations 0..3 (peeled; iteration 0 has nothing to accumulate yet) ----")
    for i in range(U):
        emit_iter(i, True, True, vm_needed(i))
    vm_steady = vm_needed(U)
    C("---- rolled steady state: iterations 4..27 ----")
    A(f"s_mov_b32 s19, {(NIT - 2 * U) // U}")
    L("L_loop")
    for i in range(U, 2 * U):
        assert vm_needed(i) == vm_steady, (i, vm_needed(i))
        emit_iter(i, True, True, vm_steady)
    A("s_sub_u32 s19, s19, 1")
    A("s_cmp_lg_u32 s19, 0")
    A("s_cbranch_scc1 L_loop")
    for i in range(2 * U, NIT - D):
        assert vm_needed(i) == vm_steady
        for _ in range(4): queue.append(("K", i + D))
        for _ in range(2): queue.append(("E", i + 2))
    C("---- tail iterations 28..31 ----")
    for i in range(NIT - D, NIT):
        emit_iter(i, (i + D) < NIT, (i + 2) < NIT, vm_needed(i))
    C("---- last accumulation (iteration 31) ----")
    A("s_waitcnt vmcnt(0) lgkmcnt(0)")
    A("s_barrier")
    emit_reads(NIT - 1)
    A("s_waitcnt lgkmcnt(0)")
    emit_mfmas()
    stamp(62)
    if MAINONLY:
        A("s_mov_b64 s[64:65], s[62:63]")
        A("s_mov_b64 s[76:77], s[62:63]")
        A("s_branch L_done")
    C("---- publish this wave's 4 tiles of partial w: quad q = m*8+t, m = 2*(v>>2)+mm, t = 2*(v&3)+tt ----")
    A("s_mov_b32 s44, s24")
    A("s_and_b32 s45, s25, 0xffff")
    A(f"s_mov_b32 s46, {WS_USED}")
    A("s_mov_b32 s47, 0x00020000")
    A("s_mov_b32 s52, s22")
    A("s_and_b32 s53, s23, 0xffff")
    A("s_mov_b32 s54, 256")
    A("s_mov_b32 s55, 0x00020000")
    A("s_lshr_b32 s26, s6, 2")
    A("s_lshl_b32 s26, s26, 14")
    A("s_and_b32 s27, s6, 3")
    A("s_lshl_b32 s27, s27, 11")
    A("s_add_u32 s26, s26, s27")
    A("s_lshl_b32 s27, s2, 15")
    A("s_add_u32 s26, s26, s27")
    A(f"v_add_u32 v{T}, s26, v{LANE16}")
    A("s_mov_b32 s27, 0x2000")
    A("s_nop 7")
    for mm in range(2):
        for tt in range(2):
            so = "s27" if mm else "0"
            A(f"buffer_store_dwordx4 {V(ACC + 4*(2*mm+tt), 4)}, v{T}, s[44:47], {so} offen offset:{tt*1024} sc1")
    stamp(76)
    C("---- arrive: every storing wave drains its stores, barrier, one lane adds to the head's counter ----")
    A("s_waitcnt vmcnt(0)")
    A("s_barrier")
    A("s_cmp_lg_u32 s6, 0")
    A("s_cbranch_scc1 L_noatom")
    A("s_lshl_b32 s26, s3, 2")
    A(f"v_mov_b32 v{T}, 1")
    A(f"v_mov_b32 v{T+1}, s26")
    A(f"v_mov_b32 v{T+2}, {FLAG}")
    A("s_mov_b64 s[40:41], exec")
    A("s_mov_b64 exec, 1")
    A(f"buffer_atomic_add v{T}, v{T+1}, s[52:55], 0 offen sc0 sc1")
    A("s_waitcnt vmcnt(0)")
    A(f"ds_write_b32 v{T+2}, v{T}")
    A("s_mov_b64 exec, s[40:41]")
    A("s_waitcnt lgkmcnt(0)")
    L("L_noatom")
    A("s_barrier")
    A(f"v_mov_b32 v{T+2}, {FLAG}")
    A(f"ds_read_b32 v{T}, v{T+2}")
    A("s_waitcnt lgkmcnt(0)")
    A("s_nop 0")
    A(f"v_readfirstlane_b32 s26, v{T}")
    stamp(64)
    A("s_nop 3")
    A("s_cmp_lg_u32 s26, 3")
    A("s_cbranch_scc1 L_done")
    C("==== finisher: partials w = 4bh + {0: K h0, 1: K h1, 2: V h0, 3: V h1} ====")
    A("s_mov_b32 s32, s20")
    A("s_and_b32 s33, s21, 0xffff")
    A(f"s_mov_b32 s34, {NREC_Q}")
    A("s_mov_b32 s35, 0x00020000")
    A("s_mov_b32 s36, s16")
    A("s_and_b32 s37, s17, 0xffff")
    A(f"s_mov_b32 s38, {NREC_Q}")
    A("s_mov_b32 s39, 0x00020000")
    for part in range(4):
        A(f"s_mov_b32 s{56+part}, {part * 32768}")
    A("s_lshl_b32 s26, s3, 17")
    A("s_lshl_b32 s27, s6, 10")
    A("s_add_u32 s26, s26, s27")
    for c in range(4):
        A(f"v_add_u32 v{T+c}, {c * 8192}, v{LANE16}")
        A(f"v_add_u32 v{T+c}, s26, v{T+c}")
    A(f"v_lshlrev_b32 v{T+4}, 4, v{C16}")
    A("s_lshl_b32 s26, s3, 8")
    A("s_lshl_b32 s27, s6, 1")
    A("s_add_u32 s26, s26, s27")
    A(f"v_add_u32 v{T+4}, s26, v{T+4}")
    for part in (0, 1):
        for c in range(4):
            A(f"buffer_load_dwordx4 {V(part * 16 + c * 4, 4)}, v{T+c}, s[44:47], s{56+part} offen sc1")
    A(f"buffer_load_ushort v64, v{T+4}, s[36:39], 0 offen")
    for part in (2, 3):
        for c in range(4):
            A(f"buffer_load_dwordx4 {V(part * 16 + c * 4, 4)}, v{T+c}, s[44:47], s{56+part} offen sc1")
    A("s_waitcnt vmcnt(8)")
    stamp(78)
    C("kp = bf16(Pk0 + Pk1) ; row-score partials q[d] * kp[r][d]")
    A("v_lshlrev_b32 v64, 16, v64")
    for i in range(16):
        A(f"v_add_f32 v{i}, v{i}, v{16+i}")
    for i in range(0, 16, 2):
        A(f"v_cvt_pk_bf16_f32 v{16+i}, v{i}, v{i+1}")
    for i in range(0, 16, 2):
        A(f"v_lshlrev_b32 v{i}, 16, v{16+i}")
        A(f"v_and_b32 v{i+1}, 0xffff0000, v{16+i}")
    for i in range(16):
        A(f"v_mul_f32 v{i}, v{i}, v64")
    for n in (8, 4, 2, 1):
        for i in range(16):
            A(f"v_add_f32_dpp v{i}, v{i}, v{i} row_ror:{n} row_mask:0xf bank_mask:0xf")
    C("lanes c16 == 0: sc[v][16c+4g+j] -> LDS")
    A("s_lshl_b32 s26, s6, 8")
    A(f"s_add_u32 s26, s26, {LDSF}")
    A(f"v_lshlrev_b32 v{T+6}, 4, v{G}")
    A(f"v_add_u32 v{T+6}, s26, v{T+6}")
    A(f"v_cmp_eq_u32 s[40:41], 0, v{C16}")
    A("s_nop 3")
    A("s_mov_b64 exec, s[40:41]")
    for c in range(4):
        A(f"ds_write_b128 v{T+6}, {V(4*c, 4)} offset:{64*c}")
    A("s_mov_b64 exec, -1")
    A("s_waitcnt lgkmcnt(0)")
    A("s_barrier")
    stamp(80)
    C("lane = r: read the 8 wave partials; meanwhile vp = bf16(Pv0 + Pv1)")
    A(f"v_lshlrev_b32 v{T+7}, 2, v{LANE}")
    A(f"v_add_u32 v{T+7}, {LDSF}, v{T+7}")
    for wv in range(8):
        A(f"ds_read_b32 v{66+wv}, v{T+7} offset:{wv*256}")
    A("s_waitcnt vmcnt(0)")
    for i in range(16):
        A(f"v_add_f32 v{32+i}, v{32+i}, v{48+i}")
    for i in range(0, 16, 2):
        A(f"v_cvt_pk_bf16_f32 v{48+i}, v{32+i}, v{33+i}")
    for i in range(0, 16, 2):
        A(f"v_lshlrev_b32 v{32+i}, 16, v{48+i}")
        A(f"v_and_b32 v{33+i}, 0xffff0000, v{48+i}")
    A("s_waitcnt lgkmcnt(0)")
    C("sum in fixed order, bf16, * (Dh**-0.5), bf16")
    for wv in range(1, 8):
        A(f"v_add_f32 v66, v66, v{66+wv}")
    rne(66, T+5)
    A("v_mul_f32 v66, 0x3db504f3, v66")
    rne(66, T+5)
    C("softmax over the 64 rows (true max)")
    A("v_mov_b32 v67, v66")
    wave_reduce(67, "max")
    A("v_sub_f32 v66, v66, v67")
    A("v_mul_f32 v66, 0x3fb8aa3b, v66")
    A("v_exp_f32 v66, v66")
    A("s_nop 1")
    A("v_mov_b32 v67, v66")
    wave_reduce(67, "add")
    A("v_rcp_f32 v67, v67")
    A("s_nop 1")
    A("v_mul_f32 v66, v66, v67")
    rne(66, T+5)
    stamp(82)
    C("p -> this wave's LDS copy -> p[16c+4g+j] per lane")
    A("s_lshl_b32 s26, s6, 8")
    A(f"s_add_u32 s26, s26, {LDSP}")
    A(f"v_lshlrev_b32 v{T+7}, 2, v{LANE}")
    A(f"v_add_u32 v{T+7}, s26, v{T+7}")
    A(f"ds_write_b32 v{T+7}, v66")
    A(f"v_lshlrev_b32 v{T+6}, 4, v{G}")
    A(f"v_add_u32 v{T+6}, s26, v{T+6}")
    A("s_waitcnt lgkmcnt(0)")
    for c in range(4):
        A(f"ds_read_b128 {V(16 + 4*c, 4)}, v{T+6} offset:{64*c}")
    A(f"v_xor_b32 v{T}, 16, v{LANE}")
    A(f"v_lshlrev_b32 v{T}, 2, v{T}")
    A(f"v_xor_b32 v{T+1}, 32, v{LANE}")
    A(f"v_lshlrev_b32 v{T+1}, 2, v{T+1}")
    A("s_waitcnt lgkmcnt(0)")
    C("o[8c16+v] partial over this lane's 16 rows, then over g")
    A("v_mul_f32 v66, v16, v32")
    for i in range(1, 16):
        A(f"v_fmac_f32 v66, v{16+i}, v{32+i}")
    A(f"ds_bpermute_b32 v67, v{T}, v66")
    A("s_waitcnt lgkmcnt(0)")
    A("v_add_f32 v66, v66, v67")
    A(f"ds_bpermute_b32 v67, v{T+1}, v66")
    A("s_waitcnt lgkmcnt(0)")
    A("v_add_f32 v66, v66, v67")
    rne(66, T+5)
    A("v_lshrrev_b32 v66, 16, v66")
    C("lanes g == 0 store out[bh][8c16 + v]")
    A(f"v_cmp_eq_u32 s[40:41], 0, v{G}")
    A("s_nop 3")
    A("s_mov_b64 exec, s[40:41]")
    A(f"buffer_store_short v66, v{T+4}, s[32:35], 0 offen")
    A("s_waitcnt vmcnt(0)")
    A("s_mov_b64 exec, -1")
    L("L_done")
    if DIAG:
        stamp(68)
        A("s_memrealtime s[86:87]")
        A("s_waitcnt lgkmcnt(0)")
        A("s_cmp_lg_u32 s6, 0")
        A("s_cbranch_scc1 L_exit")
        A("s_mov_b32 s72, s24")
        A("s_and_b32 s73, s25, 0xffff")
        A("s_mov_b32 s74, 0x20000000")
        A("s_mov_b32 s75, 0x00020000")
        A("s_lshl_b32 s26, s2, 6")
        A("s_add_u32 s26, s26, 0x1000000")
        for r, sg in enumerate((60, 62, 64, 66, 68, 76)):
            A(f"v_mov_b32 v{2+r}, s{sg}")
        A("v_mov_b32 v0, s26")
        A("buffer_store_dwordx4 v[2:5], v0, s[72:75], 0 offen")
        A("buffer_store_dwordx2 v[6:7], v0, s[72:75], 0 offen offset:16")
        for r, sg in enumerate((78, 80, 82, 84, 86)):
            A(f"v_mov_b32 v{8+r}, s{sg}")
        A("buffer_store_dwordx4 v[8:11], v0, s[72:75], 0 offen offset:32")
        A("buffer_store_dword v12, v0, s[72:75], 0 offen offset:48")
        A("s_waitcnt vmcnt(0)")
    L("L_exit")
    A("s_endpgm")
    out.append(f""".section .rodata,"a"
.p2align 6
.amdhsa_kernel {NAME}_kernel
  .amdhsa_next_free_vgpr 256
  .amdhsa_next_free_sgpr 96
  .amdhsa_accum_offset 256
  .amdhsa_group_segment_fixed_size 0
  .amdhsa_kernarg_size 64
  .amdhsa_user_sgpr_count 2
  .amdhsa_user_sgpr_kernarg_segment_ptr 1
  .amdhsa_system_sgpr_workgroup_id_x 1
.end_amdhsa_kernel""")
    return "\n".join(out) + "\n"

if __name__ == "__main__":
    path = os.environ.get("OUT", f"cdna_kernels/{NAME}.s")
    open(path, "w").write(gen())
    print("wrote", path)
```

```python
import os, re
NAME = "standalone__low_rank_proj_linformer__decode"
DIAG = int(os.environ.get("DIAG", "0"))
MAINONLY = int(os.environ.get("MAINONLY", "0"))
EWARM = int(os.environ.get("EWARM", "1"))
ROT = int(os.environ.get("ROT", "0"))
EFIXED = int(os.environ.get("EFIXED", "0"))
NOPERM = int(os.environ.get("NOPERM", "0"))
NOMFMA = int(os.environ.get("NOMFMA", "0"))
NOREADS = int(os.environ.get("NOREADS", "0"))
NOBAR = int(os.environ.get("NOBAR", "0"))
UNROLL_ALL = int(os.environ.get("UNROLL_ALL", "0"))
D = 4
RE = 4
U = 4
NIT = 32

NREC_X = 2 * 32 * 8192 * 128 * 2
NREC_P = 64 * 8192 * 2
NREC_Q = 2 * 32 * 128 * 2
WS_USED = 256 * 32768

ACC = 0
def Wr(s, rr): return 16 + s * 16 + rr * 4
FO = 80
AIN = 96
FIN = 128
AADDR = 160
WOFF, EV0, EV1, SELLO, SELHI, FXW, FXR, LANE, C16, G, LANE16 = range(168, 179)
T = 180
NVGPR = 200

FXB = 65536
LDSF = 65536
LDSP = 65536 + 2048
FLAG = 65536 + 4096

out = []
def A(x):
    m = re.search(r"offset:(\d+)", x)
    if m:
        lim = 4095 if x.startswith("buffer_") else 65535
        assert int(m.group(1)) <= lim, ("immediate offset out of range", x)
    out.append("    " + x)
def L(x): out.append(x + ":")
def C(x): out.append("    ; " + x)
def V(n, cnt=1): return f"v{n}" if cnt == 1 else f"v[{n}:{n+cnt-1}]"
def rne(x, tmp):
    A(f"v_bfe_u32 v{tmp}, v{x}, 16, 1")
    A(f"v_add_u32 v{tmp}, 0x7fff, v{tmp}")
    A(f"v_add_u32 v{x}, v{x}, v{tmp}")
    A(f"v_and_b32 v{x}, 0xffff0000, v{x}")

queue = []
def issue_K(u):
    s = u % D
    for rr in range(4):
        so = "s30" if ROT else "0"
        A(f"buffer_load_dwordx4 {V(Wr(s, rr), 4)}, v{WOFF}, s[8:11], {so} offen offset:{rr*256} nt")
        queue.append(("K", u))
    if ROT:
        A("s_add_u32 s30, s30, 0x8000")
        A("s_and_b32 s30, s30, 0xfffff")
    else:
        A(f"v_add_u32 v{WOFF}, 0x8000, v{WOFF}")
def issue_E(c):
    slot = c % RE
    for p, ev in enumerate((EV0, EV1)):
        A(f"s_add_u32 m0, s28, {slot * 16384 + p * 1024}")
        A("s_nop 0")
        A(f"buffer_load_dwordx4 v{ev}, s[12:15], s18 offen lds")
        queue.append(("E", c))
    if not EFIXED:
        A("s_add_u32 s18, s18, 0x100")
    if ROT:
        A("s_and_b32 s18, s18, 0x1fff")
def vm_needed(i):
    need = [idx for idx, op in enumerate(queue) if op == ("K", i) or op == ("E", i - 1)]
    return len(queue) - 1 - max(need)

def emit_reads(i):
    slot, buf = i % RE, i % 2
    for u in range(8):
        for mm in range(2):
            A(f"ds_read_b64 {V(AIN + 4*u + 2*mm, 2)}, v{AADDR + u} offset:{slot * 16384 + mm * 4096}")
        A(f"ds_read_b128 {V(FIN + 4*u, 4)}, v{FXR} offset:{buf * 32768 + u * 4096}")
def emit_mfmas():
    for u in range(8):
        for mm in range(2):
            for tt in range(2):
                a = ACC + 4 * (2*mm + tt)
                A(f"v_mfma_f32_16x16x16_bf16 {V(a,4)}, {V(AIN + 4*u + 2*mm, 2)}, {V(FIN + 4*u + 2*tt, 2)}, {V(a,4)}")

def emit_iter(i, issueK, issueE, vm):
    k = i % D
    A(f"s_waitcnt vmcnt({vm}) lgkmcnt(0)")
    if not NOBAR: A("s_barrier")
    if i > 0 and not NOREADS: emit_reads(i - 1)
    for t in range(8 if not NOPERM else 0):
        sel = SELLO if t % 2 == 0 else SELHI
        for h in range(2):
            A(f"v_perm_b32 v{FO + 2*t + h}, v{Wr(k, 2*h+1) + t//2}, v{Wr(k, 2*h) + t//2}, v{sel}")
    for x in range(4 if not NOPERM else 0):
        A(f"ds_write_b128 v{FXW}, {V(FO + 4*x, 4)} offset:{(i % 2) * 32768 + x * 1024}")
    if issueK: issue_K(i + D)
    if issueE: issue_E(i + 2)
    if i > 0:
        A("s_waitcnt lgkmcnt(4)")
        if not NOMFMA: emit_mfmas()

def dpp_reduce(reg, op):
    for n in (8, 4, 2, 1):
        A("s_nop 1")
        A(f"v_{op}_f32_dpp v{reg}, v{reg}, v{reg} row_ror:{n} row_mask:0xf bank_mask:0xf")
def wave_reduce(reg, op):
    dpp_reduce(reg, op)
    A("s_nop 0")
    for r, sg in enumerate((42, 43, 48, 49)):
        A(f"v_readlane_b32 s{sg}, v{reg}, {16*r}")
    A("s_nop 1")
    A(f"v_mov_b32 v{reg}, s42")
    for sg in (43, 48, 49):
        A(f"v_{op}_f32 v{reg}, s{sg}, v{reg}")
def stamp(sreg):
    if DIAG:
        A(f"s_memtime s[{sreg}:{sreg+1}]")
        A("s_waitcnt lgkmcnt(0)")
def lane_ids(lane, c16, g, lane16):
    A(f"v_mbcnt_lo_u32_b32 v{lane}, -1, 0")
    A(f"v_mbcnt_hi_u32_b32 v{lane}, -1, v{lane}")
    A(f"v_lshlrev_b32 v{lane16}, 4, v{lane}")
    A(f"v_and_b32 v{c16}, 15, v{lane}")
    A(f"v_lshrrev_b32 v{g}, 4, v{lane}")

def gen():
    out.append(f"""; Kernarg layout (64 bytes): q@0 k@8 v@16 e_proj@24 f_proj@32 out@40 debug@48 ws@56
; @launch grid=(256,1,1) block=(512,1,1) lds=131072
.amdgcn_target "amdgcn-amd-amdhsa--gfx950"
.text
.globl {NAME}_kernel
.p2align 8
.type {NAME}_kernel,@function
{NAME}_kernel:""")
    A("s_cmp_ge_u32 s2, 256")
    A("s_cbranch_scc1 L_exit")
    stamp(60)
    if DIAG:
        A("s_memrealtime s[84:85]")
        A("s_waitcnt lgkmcnt(0)")
    A("s_lshr_b32 s3, s2, 2")
    A("s_lshr_b32 s4, s2, 1")
    A("s_and_b32 s4, s4, 1")
    A("s_and_b32 s5, s2, 1")
    A("s_load_dwordx4 s[8:11], s[0:1], 8")
    A("s_load_dwordx4 s[12:15], s[0:1], 24")
    A("s_load_dwordx2 s[16:17], s[0:1], 0")
    A("s_load_dwordx4 s[20:23], s[0:1], 40")
    A("s_load_dwordx2 s[24:25], s[0:1], 56")
    A("v_readfirstlane_b32 s6, v0")
    A(f"v_and_b32 v{LANE}, 63, v0")
    A(f"v_lshlrev_b32 v{LANE16}, 4, v{LANE}")
    A(f"v_and_b32 v{C16}, 15, v{LANE}")
    A(f"v_lshrrev_b32 v{G}, 4, v{LANE}")
    A("s_lshr_b32 s6, s6, 6")
    A("s_waitcnt lgkmcnt(0)")
    A("s_cmp_eq_u32 s4, 0")
    A("s_cselect_b64 s[8:9], s[8:9], s[10:11]")
    A("s_cselect_b64 s[12:13], s[12:13], s[14:15]")
    A("s_and_b32 s9, s9, 0xffff")
    A(f"s_mov_b32 s10, {NREC_X}")
    A("s_mov_b32 s11, 0x00020000")
    A("s_and_b32 s13, s13, 0xffff")
    A(f"s_mov_b32 s14, {NREC_P}")
    A("s_mov_b32 s15, 0x00020000")
    C("K/V voffset = bh*2MiB + half*1MiB + wave*4096 + g*1024 + c16*16")
    A("s_lshl_b32 s26, s3, 21")
    A("s_lshl_b32 s27, s5, 20")
    A("s_add_u32 s26, s26, s27")
    A("s_lshl_b32 s27, s6, 12")
    A("s_add_u32 s26, s26, s27")
    A(f"v_lshlrev_b32 v{WOFF}, 4, v{C16}")
    A(f"v_lshl_add_u32 v{WOFF}, v{G}, 10, v{WOFF}")
    A(f"v_add_u32 v{WOFF}, s26, v{WOFF}")
    C("projection DMA source: piece p of wave v = rows r = 8v+4p+g, lane slot c16 <- source chunk c16 ^ (r&15)")
    for p, ev in enumerate((EV0, EV1)):
        A("s_and_b32 s26, s6, 1")
        A("s_lshl_b32 s26, s26, 3")
        A(f"s_add_u32 s26, s26, {4*p}")
        A(f"v_add_u32 v{T}, s26, v{G}")
        A(f"v_xor_b32 v{T}, v{T}, v{C16}")
        A(f"v_lshlrev_b32 v{T}, 4, v{T}")
        A(f"v_lshl_add_u32 v{ev}, v{G}, 14, v{T}")
        A("s_lshl_b32 s26, s6, 17")
        A(f"s_add_u32 s26, s26, {4 * p * 16384}")
        A("s_lshl_b32 s27, s5, 13")
        A("s_add_u32 s26, s26, s27")
        A(f"v_add_u32 v{ev}, s26, v{ev}")
    C("A-fragment LDS address per source unit u: row c16 (+16m), source chunk 2u+(g>>1), byte (g&1)*8;")
    C("this wave's m pair starts at m = 2*(v>>2)")
    A(f"v_and_b32 v{T+1}, 1, v{G}")
    A(f"v_lshlrev_b32 v{T+1}, 3, v{T+1}")
    A(f"v_lshl_add_u32 v{T+1}, v{C16}, 8, v{T+1}")
    A("s_lshr_b32 s26, s6, 2")
    A("s_lshl_b32 s26, s26, 13")
    A(f"v_add_u32 v{T+1}, s26, v{T+1}")
    A(f"v_lshrrev_b32 v{T+2}, 1, v{G}")
    for u in range(8):
        A(f"v_add_u32 v{T}, {2*u}, v{T+2}")
        A(f"v_xor_b32 v{T}, v{T}, v{C16}")
        A(f"v_lshl_add_u32 v{AADDR + u}, v{T}, 4, v{T+1}")
    C("B-fragment exchange addresses: write own unit (wave*4096), read quad tp = v&3 of every unit")
    A("s_lshl_b32 s26, s6, 12")
    A(f"s_add_u32 s26, s26, {FXB}")
    A(f"v_add_u32 v{FXW}, s26, v{LANE16}")
    A("s_and_b32 s26, s6, 3")
    A("s_lshl_b32 s26, s26, 10")
    A(f"s_add_u32 s26, s26, {FXB}")
    A(f"v_add_u32 v{FXR}, s26, v{LANE16}")
    A(f"v_mov_b32 v{SELLO}, 0x05040100")
    A(f"v_mov_b32 v{SELHI}, 0x07060302")
    A("s_lshl_b32 s28, s6, 11")
    A("s_mov_b32 s18, 0")
    if ROT:
        C("rotated start (function of the workgroup id only): iteration j0 = (wg >> 3) & 31 first, wrapping")
        A("s_lshr_b32 s30, s2, 3")
        A("s_and_b32 s30, s30, 31")
        A("s_lshl_b32 s18, s30, 8")
        A("s_lshl_b32 s30, s30, 15")
    if EWARM:
        C("L2 warm-up (speed only): this workgroup touches chunk (wg>>3)&31 of its projection half")
        A("s_lshr_b32 s31, s2, 3")
        A("s_and_b32 s31, s31, 31")
        A("s_lshl_b32 s31, s31, 8")
        for ev in (EV0, EV1):
            A(f"buffer_load_dwordx4 {V(T+4, 4)}, v{ev}, s[12:15], s31 offen")
    C("---- prologue ----")
    issue_K(0); issue_K(1); issue_K(2); issue_E(0); issue_K(3); issue_E(1)
    for r in range(16):
        A(f"v_mov_b32 v{ACC + r}, 0")
    C("---- iterations 0..3 (peeled; iteration 0 has nothing to accumulate yet) ----")
    for i in range(U):
        emit_iter(i, True, True, vm_needed(i))
    vm_steady = vm_needed(U)
    if UNROLL_ALL:
        for i in range(U, NIT - D):
            emit_iter(i, True, True, vm_needed(i))
    else:
        C("---- rolled steady state: iterations 4..27 ----")
        A(f"s_mov_b32 s19, {(NIT - 2 * U) // U}")
        L("L_loop")
        for i in range(U, 2 * U):
            assert vm_needed(i) == vm_steady, (i, vm_needed(i))
            emit_iter(i, True, True, vm_steady)
        A("s_sub_u32 s19, s19, 1")
        A("s_cmp_lg_u32 s19, 0")
        A("s_cbranch_scc1 L_loop")
        for i in range(2 * U, NIT - D):
            assert vm_needed(i) == vm_steady
            for _ in range(4): queue.append(("K", i + D))
            for _ in range(2): queue.append(("E", i + 2))
    C("---- tail iterations 28..31 ----")
    for i in range(NIT - D, NIT):
        emit_iter(i, (i + D) < NIT, (i + 2) < NIT, vm_needed(i))
    C("---- last accumulation (iteration 31) ----")
    A("s_waitcnt vmcnt(0) lgkmcnt(0)")
    A("s_barrier")
    emit_reads(NIT - 1)
    A("s_waitcnt lgkmcnt(0)")
    emit_mfmas()
    stamp(62)
    if MAINONLY:
        A("s_mov_b64 s[64:65], s[62:63]")
        A("s_mov_b64 s[76:77], s[62:63]")
        A("s_branch L_done")
    C("---- publish this wave's 4 tiles of partial w: quad q = m*8+t, m = 2*(v>>2)+mm, t = 2*(v&3)+tt ----")
    A("s_mov_b32 s44, s24")
    A("s_and_b32 s45, s25, 0xffff")
    A(f"s_mov_b32 s46, {WS_USED}")
    A("s_mov_b32 s47, 0x00020000")
    A("s_mov_b32 s52, s22")
    A("s_and_b32 s53, s23, 0xffff")
    A("s_mov_b32 s54, 256")
    A("s_mov_b32 s55, 0x00020000")
    A("s_lshr_b32 s26, s6, 2")
    A("s_lshl_b32 s26, s26, 14")
    A("s_and_b32 s27, s6, 3")
    A("s_lshl_b32 s27, s27, 11")
    A("s_add_u32 s26, s26, s27")
    A("s_lshl_b32 s27, s2, 15")
    A("s_add_u32 s26, s26, s27")
    A(f"v_add_u32 v{T}, s26, v{LANE16}")
    A("s_mov_b32 s27, 0x2000")
    A("s_nop 7")
    for mm in range(2):
        for tt in range(2):
            so = "s27" if mm else "0"
            A(f"buffer_store_dwordx4 {V(ACC + 4*(2*mm+tt), 4)}, v{T}, s[44:47], {so} offen offset:{tt*1024} sc1")
    stamp(76)
    C("---- arrive: every storing wave drains its stores, barrier, one lane adds to the head's counter ----")
    A("s_waitcnt vmcnt(0)")
    A("s_barrier")
    A("s_cmp_lg_u32 s6, 0")
    A("s_cbranch_scc1 L_noatom")
    A("s_lshl_b32 s26, s3, 2")
    A(f"v_mov_b32 v{T}, 1")
    A(f"v_mov_b32 v{T+1}, s26")
    A(f"v_mov_b32 v{T+2}, {FLAG}")
    A("s_mov_b64 s[40:41], exec")
    A("s_mov_b64 exec, 1")
    A(f"buffer_atomic_add v{T}, v{T+1}, s[52:55], 0 offen sc0 sc1")
    A("s_waitcnt vmcnt(0)")
    A(f"ds_write_b32 v{T+2}, v{T}")
    A("s_mov_b64 exec, s[40:41]")
    A("s_waitcnt lgkmcnt(0)")
    L("L_noatom")
    A("s_barrier")
    A(f"v_mov_b32 v{T+2}, {FLAG}")
    A(f"ds_read_b32 v{T}, v{T+2}")
    A("s_waitcnt lgkmcnt(0)")
    A("s_nop 0")
    A(f"v_readfirstlane_b32 s26, v{T}")
    stamp(64)
    A("s_nop 3")
    A("s_cmp_lg_u32 s26, 3")
    A("s_cbranch_scc1 L_done")
    C("==== finisher: partials w = 4bh + {0: K h0, 1: K h1, 2: V h0, 3: V h1} ====")
    A("s_mov_b32 s32, s20")
    A("s_and_b32 s33, s21, 0xffff")
    A(f"s_mov_b32 s34, {NREC_Q}")
    A("s_mov_b32 s35, 0x00020000")
    A("s_mov_b32 s36, s16")
    A("s_and_b32 s37, s17, 0xffff")
    A(f"s_mov_b32 s38, {NREC_Q}")
    A("s_mov_b32 s39, 0x00020000")
    for part in range(4):
        A(f"s_mov_b32 s{56+part}, {part * 32768}")
    A("s_lshl_b32 s26, s3, 17")
    A("s_lshl_b32 s27, s6, 10")
    A("s_add_u32 s26, s26, s27")
    for c in range(4):
        A(f"v_add_u32 v{T+c}, {c * 8192}, v{LANE16}")
        A(f"v_add_u32 v{T+c}, s26, v{T+c}")
    A(f"v_lshlrev_b32 v{T+4}, 4, v{C16}")
    A("s_lshl_b32 s26, s3, 8")
    A("s_lshl_b32 s27, s6, 1")
    A("s_add_u32 s26, s26, s27")
    A(f"v_add_u32 v{T+4}, s26, v{T+4}")
    for part in (0, 1):
        for c in range(4):
            A(f"buffer_load_dwordx4 {V(part * 16 + c * 4, 4)}, v{T+c}, s[44:47], s{56+part} offen sc1")
    A(f"buffer_load_ushort v64, v{T+4}, s[36:39], 0 offen")
    C("every wave's K-partial loads are queued before any V-partial load")
    A("s_barrier")
    for part in (2, 3):
        for c in range(4):
            A(f"buffer_load_dwordx4 {V(part * 16 + c * 4, 4)}, v{T+c}, s[44:47], s{56+part} offen sc1")
    A("s_waitcnt vmcnt(8)")
    stamp(78)
    C("kp = bf16(Pk0 + Pk1) ; row-score partials q[d] * kp[r][d]")
    A("v_lshlrev_b32 v64, 16, v64")
    for i in range(16):
        A(f"v_add_f32 v{i}, v{i}, v{16+i}")
    for i in range(0, 16, 2):
        A(f"v_cvt_pk_bf16_f32 v{16+i}, v{i}, v{i+1}")
    for i in range(0, 16, 2):
        A(f"v_lshlrev_b32 v{i}, 16, v{16+i}")
        A(f"v_and_b32 v{i+1}, 0xffff0000, v{16+i}")
    for i in range(16):
        A(f"v_mul_f32 v{i}, v{i}, v64")
    for n in (8, 4, 2, 1):
        for i in range(16):
            A(f"v_add_f32_dpp v{i}, v{i}, v{i} row_ror:{n} row_mask:0xf bank_mask:0xf")
    C("lanes c16 == 0: sc[v][16c+4g+j] -> LDS")
    A("s_lshl_b32 s26, s6, 8")
    A(f"s_add_u32 s26, s26, {LDSF}")
    A(f"v_lshlrev_b32 v{T+6}, 4, v{G}")
    A(f"v_add_u32 v{T+6}, s26, v{T+6}")
    A(f"v_cmp_eq_u32 s[40:41], 0, v{C16}")
    A("s_nop 3")
    A("s_mov_b64 exec, s[40:41]")
    for c in range(4):
        A(f"ds_write_b128 v{T+6}, {V(4*c, 4)} offset:{64*c}")
    A("s_mov_b64 exec, -1")
    A("s_waitcnt lgkmcnt(0)")
    A("s_barrier")
    stamp(80)
    C("lane = r: read the 8 wave partials; meanwhile vp = bf16(Pv0 + Pv1)")
    A(f"v_lshlrev_b32 v{T+7}, 2, v{LANE}")
    A(f"v_add_u32 v{T+7}, {LDSF}, v{T+7}")
    for wv in range(8):
        A(f"ds_read_b32 v{66+wv}, v{T+7} offset:{wv*256}")
    A("s_waitcnt vmcnt(0)")
    for i in range(16):
        A(f"v_add_f32 v{32+i}, v{32+i}, v{48+i}")
    for i in range(0, 16, 2):
        A(f"v_cvt_pk_bf16_f32 v{48+i}, v{32+i}, v{33+i}")
    for i in range(0, 16, 2):
        A(f"v_lshlrev_b32 v{32+i}, 16, v{48+i}")
        A(f"v_and_b32 v{33+i}, 0xffff0000, v{48+i}")
    A("s_waitcnt lgkmcnt(0)")
    C("sum in fixed order, bf16, * (Dh**-0.5), bf16")
    for wv in range(1, 8):
        A(f"v_add_f32 v66, v66, v{66+wv}")
    rne(66, T+5)
    A("v_mul_f32 v66, 0x3db504f3, v66")
    rne(66, T+5)
    C("softmax over the 64 rows (true max)")
    A("v_mov_b32 v67, v66")
    wave_reduce(67, "max")
    A("v_sub_f32 v66, v66, v67")
    A("v_mul_f32 v66, 0x3fb8aa3b, v66")
    A("v_exp_f32 v66, v66")
    A("s_nop 1")
    A("v_mov_b32 v67, v66")
    wave_reduce(67, "add")
    A("v_rcp_f32 v67, v67")
    A("s_nop 1")
    A("v_mul_f32 v66, v66, v67")
    rne(66, T+5)
    stamp(82)
    C("p -> this wave's LDS copy -> p[16c+4g+j] per lane")
    A("s_lshl_b32 s26, s6, 8")
    A(f"s_add_u32 s26, s26, {LDSP}")
    A(f"v_lshlrev_b32 v{T+7}, 2, v{LANE}")
    A(f"v_add_u32 v{T+7}, s26, v{T+7}")
    A(f"ds_write_b32 v{T+7}, v66")
    A(f"v_lshlrev_b32 v{T+6}, 4, v{G}")
    A(f"v_add_u32 v{T+6}, s26, v{T+6}")
    A("s_waitcnt lgkmcnt(0)")
    for c in range(4):
        A(f"ds_read_b128 {V(16 + 4*c, 4)}, v{T+6} offset:{64*c}")
    A(f"v_xor_b32 v{T}, 16, v{LANE}")
    A(f"v_lshlrev_b32 v{T}, 2, v{T}")
    A(f"v_xor_b32 v{T+1}, 32, v{LANE}")
    A(f"v_lshlrev_b32 v{T+1}, 2, v{T+1}")
    A("s_waitcnt lgkmcnt(0)")
    C("o[8c16+v] partial over this lane's 16 rows, then over g")
    A("v_mul_f32 v66, v16, v32")
    for i in range(1, 16):
        A(f"v_fmac_f32 v66, v{16+i}, v{32+i}")
    A(f"ds_bpermute_b32 v67, v{T}, v66")
    A("s_waitcnt lgkmcnt(0)")
    A("v_add_f32 v66, v66, v67")
    A(f"ds_bpermute_b32 v67, v{T+1}, v66")
    A("s_waitcnt lgkmcnt(0)")
    A("v_add_f32 v66, v66, v67")
    rne(66, T+5)
    A("v_lshrrev_b32 v66, 16, v66")
    C("lanes g == 0 store out[bh][8c16 + v]")
    A(f"v_cmp_eq_u32 s[40:41], 0, v{G}")
    A("s_nop 3")
    A("s_mov_b64 exec, s[40:41]")
    A(f"buffer_store_short v66, v{T+4}, s[32:35], 0 offen")
    A("s_waitcnt vmcnt(0)")
    A("s_mov_b64 exec, -1")
    L("L_done")
    if DIAG:
        stamp(68)
        A("s_memrealtime s[86:87]")
        A("s_waitcnt lgkmcnt(0)")
        A("s_cmp_lg_u32 s6, 0")
        A("s_cbranch_scc1 L_exit")
        A("s_mov_b32 s72, s24")
        A("s_and_b32 s73, s25, 0xffff")
        A("s_mov_b32 s74, 0x20000000")
        A("s_mov_b32 s75, 0x00020000")
        A("s_lshl_b32 s26, s2, 6")
        A("s_add_u32 s26, s26, 0x1000000")
        for r, sg in enumerate((60, 62, 64, 66, 68, 76)):
            A(f"v_mov_b32 v{2+r}, s{sg}")
        A("v_mov_b32 v0, s26")
        A("buffer_store_dwordx4 v[2:5], v0, s[72:75], 0 offen")
        A("buffer_store_dwordx2 v[6:7], v0, s[72:75], 0 offen offset:16")
        for r, sg in enumerate((78, 80, 82, 84, 86)):
            A(f"v_mov_b32 v{8+r}, s{sg}")
        A("buffer_store_dwordx4 v[8:11], v0, s[72:75], 0 offen offset:32")
        A("buffer_store_dword v12, v0, s[72:75], 0 offen offset:48")
        A("s_waitcnt vmcnt(0)")
    L("L_exit")
    A("s_endpgm")
    out.append(f""".section .rodata,"a"
.p2align 6
.amdhsa_kernel {NAME}_kernel
  .amdhsa_next_free_vgpr 256
  .amdhsa_next_free_sgpr 96
  .amdhsa_accum_offset 256
  .amdhsa_group_segment_fixed_size 0
  .amdhsa_kernarg_size 64
  .amdhsa_user_sgpr_count 2
  .amdhsa_user_sgpr_kernarg_segment_ptr 1
  .amdhsa_system_sgpr_workgroup_id_x 1
.end_amdhsa_kernel""")
    return "\n".join(out) + "\n"

if __name__ == "__main__":
    path = os.environ.get("OUT", f"cdna_kernels/{NAME}.s")
    open(path, "w").write(gen())
    print("wrote", path)
```

```python
import os, re
NAME = "standalone__low_rank_proj_linformer__decode"
DIAG = int(os.environ.get("DIAG", "0"))
MAINONLY = int(os.environ.get("MAINONLY", "0"))
EWARM = int(os.environ.get("EWARM", "1"))
ROT = int(os.environ.get("ROT", "0"))
EFIXED = int(os.environ.get("EFIXED", "0"))
NOPERM = int(os.environ.get("NOPERM", "0"))
NOMFMA = int(os.environ.get("NOMFMA", "0"))
NOREADS = int(os.environ.get("NOREADS", "0"))
NOBAR = int(os.environ.get("NOBAR", "0"))
UNROLL_ALL = int(os.environ.get("UNROLL_ALL", "0"))
D = int(os.environ.get("DEPTH", "2"))
RE = 4
import math
U = D * 4 // math.gcd(D, 4)
NIT = 32

NREC_X = 2 * 32 * 8192 * 128 * 2
NREC_P = 64 * 8192 * 2
NREC_Q = 2 * 32 * 128 * 2
WS_USED = 256 * 32768

ACC = 0
def Wr(s, rr): return 16 + s * 16 + rr * 4
FO = 16 + 16 * D
AIN = FO + 16
FIN = AIN + 32
AADDR = FIN + 32
WOFF, EV0, EV1, SELLO, SELHI, FXW, FXR, LANE, C16, G, LANE16 = range(AADDR + 8, AADDR + 19)
T = AADDR + 20
assert T + 8 <= 256
NVGPR = 200

FXB = 65536
LDSF = 65536
LDSP = 65536 + 2048
FLAG = 65536 + 4096

out = []
def A(x):
    m = re.search(r"offset:(\d+)", x)
    if m:
        lim = 4095 if x.startswith("buffer_") else 65535
        assert int(m.group(1)) <= lim, ("immediate offset out of range", x)
    out.append("    " + x)
def L(x): out.append(x + ":")
def C(x): out.append("    ; " + x)
def V(n, cnt=1): return f"v{n}" if cnt == 1 else f"v[{n}:{n+cnt-1}]"
def rne(x, tmp):
    A(f"v_bfe_u32 v{tmp}, v{x}, 16, 1")
    A(f"v_add_u32 v{tmp}, 0x7fff, v{tmp}")
    A(f"v_add_u32 v{x}, v{x}, v{tmp}")
    A(f"v_and_b32 v{x}, 0xffff0000, v{x}")

queue = []
def issue_K(u):
    s = u % D
    for rr in range(4):
        so = "s30" if ROT else "0"
        A(f"buffer_load_dwordx4 {V(Wr(s, rr), 4)}, v{WOFF}, s[8:11], {so} offen offset:{rr*256} nt")
        queue.append(("K", u))
    if ROT:
        A("s_add_u32 s30, s30, 0x8000")
        A("s_and_b32 s30, s30, 0xfffff")
    else:
        A(f"v_add_u32 v{WOFF}, 0x8000, v{WOFF}")
def issue_E(c):
    slot = c % RE
    for p, ev in enumerate((EV0, EV1)):
        A(f"s_add_u32 m0, s28, {slot * 16384 + p * 1024}")
        A("s_nop 0")
        A(f"buffer_load_dwordx4 v{ev}, s[12:15], s18 offen lds")
        queue.append(("E", c))
    if not EFIXED:
        A("s_add_u32 s18, s18, 0x100")
    if ROT:
        A("s_and_b32 s18, s18, 0x1fff")
def vm_needed(i):
    need = [idx for idx, op in enumerate(queue) if op == ("K", i) or op == ("E", i - 1)]
    return len(queue) - 1 - max(need)

def emit_reads(i):
    slot, buf = i % RE, i % 2
    for u in range(8):
        for mm in range(2):
            A(f"ds_read_b64 {V(AIN + 4*u + 2*mm, 2)}, v{AADDR + u} offset:{slot * 16384 + mm * 4096}")
        A(f"ds_read_b128 {V(FIN + 4*u, 4)}, v{FXR} offset:{buf * 32768 + u * 4096}")
def emit_mfmas():
    for u in range(8):
        for mm in range(2):
            for tt in range(2):
                a = ACC + 4 * (2*mm + tt)
                A(f"v_mfma_f32_16x16x16_bf16 {V(a,4)}, {V(AIN + 4*u + 2*mm, 2)}, {V(FIN + 4*u + 2*tt, 2)}, {V(a,4)}")

def emit_iter(i, issueK, issueE, vm):
    k = i % D
    A(f"s_waitcnt vmcnt({vm}) lgkmcnt(0)")
    if not NOBAR: A("s_barrier")
    if i > 0 and not NOREADS: emit_reads(i - 1)
    for t in range(8 if not NOPERM else 0):
        sel = SELLO if t % 2 == 0 else SELHI
        for h in range(2):
            A(f"v_perm_b32 v{FO + 2*t + h}, v{Wr(k, 2*h+1) + t//2}, v{Wr(k, 2*h) + t//2}, v{sel}")
    for x in range(4 if not NOPERM else 0):
        A(f"ds_write_b128 v{FXW}, {V(FO + 4*x, 4)} offset:{(i % 2) * 32768 + x * 1024}")
    if issueK: issue_K(i + D)
    if issueE: issue_E(i + 2)
    if i > 0:
        A("s_waitcnt lgkmcnt(4)")
        if not NOMFMA: emit_mfmas()

def dpp_reduce(reg, op):
    for n in (8, 4, 2, 1):
        A("s_nop 1")
        A(f"v_{op}_f32_dpp v{reg}, v{reg}, v{reg} row_ror:{n} row_mask:0xf bank_mask:0xf")
def wave_reduce(reg, op):
    dpp_reduce(reg, op)
    A("s_nop 0")
    for r, sg in enumerate((42, 43, 48, 49)):
        A(f"v_readlane_b32 s{sg}, v{reg}, {16*r}")
    A("s_nop 1")
    A(f"v_mov_b32 v{reg}, s42")
    for sg in (43, 48, 49):
        A(f"v_{op}_f32 v{reg}, s{sg}, v{reg}")
def stamp(sreg):
    if DIAG:
        A(f"s_memtime s[{sreg}:{sreg+1}]")
        A("s_waitcnt lgkmcnt(0)")
def lane_ids(lane, c16, g, lane16):
    A(f"v_mbcnt_lo_u32_b32 v{lane}, -1, 0")
    A(f"v_mbcnt_hi_u32_b32 v{lane}, -1, v{lane}")
    A(f"v_lshlrev_b32 v{lane16}, 4, v{lane}")
    A(f"v_and_b32 v{c16}, 15, v{lane}")
    A(f"v_lshrrev_b32 v{g}, 4, v{lane}")

def gen():
    out.append(f"""; Kernarg layout (64 bytes): q@0 k@8 v@16 e_proj@24 f_proj@32 out@40 debug@48 ws@56
; @launch grid=(256,1,1) block=(512,1,1) lds=131072
.amdgcn_target "amdgcn-amd-amdhsa--gfx950"
.text
.globl {NAME}_kernel
.p2align 8
.type {NAME}_kernel,@function
{NAME}_kernel:""")
    A("s_cmp_ge_u32 s2, 256")
    A("s_cbranch_scc1 L_exit")
    stamp(60)
    if DIAG:
        A("s_memrealtime s[84:85]")
        A("s_waitcnt lgkmcnt(0)")
    A("s_lshr_b32 s3, s2, 2")
    A("s_lshr_b32 s4, s2, 1")
    A("s_and_b32 s4, s4, 1")
    A("s_and_b32 s5, s2, 1")
    A("s_load_dwordx4 s[8:11], s[0:1], 8")
    A("s_load_dwordx4 s[12:15], s[0:1], 24")
    A("s_load_dwordx2 s[16:17], s[0:1], 0")
    A("s_load_dwordx4 s[20:23], s[0:1], 40")
    A("s_load_dwordx2 s[24:25], s[0:1], 56")
    A("v_readfirstlane_b32 s6, v0")
    A(f"v_and_b32 v{LANE}, 63, v0")
    A(f"v_lshlrev_b32 v{LANE16}, 4, v{LANE}")
    A(f"v_and_b32 v{C16}, 15, v{LANE}")
    A(f"v_lshrrev_b32 v{G}, 4, v{LANE}")
    A("s_lshr_b32 s6, s6, 6")
    A("s_waitcnt lgkmcnt(0)")
    A("s_cmp_eq_u32 s4, 0")
    A("s_cselect_b64 s[8:9], s[8:9], s[10:11]")
    A("s_cselect_b64 s[12:13], s[12:13], s[14:15]")
    A("s_and_b32 s9, s9, 0xffff")
    A(f"s_mov_b32 s10, {NREC_X}")
    A("s_mov_b32 s11, 0x00020000")
    A("s_and_b32 s13, s13, 0xffff")
    A(f"s_mov_b32 s14, {NREC_P}")
    A("s_mov_b32 s15, 0x00020000")
    C("K/V voffset = bh*2MiB + half*1MiB + wave*4096 + g*1024 + c16*16")
    A("s_lshl_b32 s26, s3, 21")
    A("s_lshl_b32 s27, s5, 20")
    A("s_add_u32 s26, s26, s27")
    A("s_lshl_b32 s27, s6, 12")
    A("s_add_u32 s26, s26, s27")
    A(f"v_lshlrev_b32 v{WOFF}, 4, v{C16}")
    A(f"v_lshl_add_u32 v{WOFF}, v{G}, 10, v{WOFF}")
    A(f"v_add_u32 v{WOFF}, s26, v{WOFF}")
    C("projection DMA source: piece p of wave v = rows r = 8v+4p+g, lane slot c16 <- source chunk c16 ^ (r&15)")
    for p, ev in enumerate((EV0, EV1)):
        A("s_and_b32 s26, s6, 1")
        A("s_lshl_b32 s26, s26, 3")
        A(f"s_add_u32 s26, s26, {4*p}")
        A(f"v_add_u32 v{T}, s26, v{G}")
        A(f"v_xor_b32 v{T}, v{T}, v{C16}")
        A(f"v_lshlrev_b32 v{T}, 4, v{T}")
        A(f"v_lshl_add_u32 v{ev}, v{G}, 14, v{T}")
        A("s_lshl_b32 s26, s6, 17")
        A(f"s_add_u32 s26, s26, {4 * p * 16384}")
        A("s_lshl_b32 s27, s5, 13")
        A("s_add_u32 s26, s26, s27")
        A(f"v_add_u32 v{ev}, s26, v{ev}")
    C("A-fragment LDS address per source unit u: row c16 (+16m), source chunk 2u+(g>>1), byte (g&1)*8;")
    C("this wave's m pair starts at m = 2*(v>>2)")
    A(f"v_and_b32 v{T+1}, 1, v{G}")
    A(f"v_lshlrev_b32 v{T+1}, 3, v{T+1}")
    A(f"v_lshl_add_u32 v{T+1}, v{C16}, 8, v{T+1}")
    A("s_lshr_b32 s26, s6, 2")
    A("s_lshl_b32 s26, s26, 13")
    A(f"v_add_u32 v{T+1}, s26, v{T+1}")
    A(f"v_lshrrev_b32 v{T+2}, 1, v{G}")
    for u in range(8):
        A(f"v_add_u32 v{T}, {2*u}, v{T+2}")
        A(f"v_xor_b32 v{T}, v{T}, v{C16}")
        A(f"v_lshl_add_u32 v{AADDR + u}, v{T}, 4, v{T+1}")
    C("B-fragment exchange addresses: write own unit (wave*4096), read quad tp = v&3 of every unit")
    A("s_lshl_b32 s26, s6, 12")
    A(f"s_add_u32 s26, s26, {FXB}")
    A(f"v_add_u32 v{FXW}, s26, v{LANE16}")
    A("s_and_b32 s26, s6, 3")
    A("s_lshl_b32 s26, s26, 10")
    A(f"s_add_u32 s26, s26, {FXB}")
    A(f"v_add_u32 v{FXR}, s26, v{LANE16}")
    A(f"v_mov_b32 v{SELLO}, 0x05040100")
    A(f"v_mov_b32 v{SELHI}, 0x07060302")
    A("s_lshl_b32 s28, s6, 11")
    A("s_mov_b32 s18, 0")
    if ROT:
        C("rotated start (function of the workgroup id only): iteration j0 = (wg >> 3) & 31 first, wrapping")
        A("s_lshr_b32 s30, s2, 3")
        A("s_and_b32 s30, s30, 31")
        A("s_lshl_b32 s18, s30, 8")
        A("s_lshl_b32 s30, s30, 15")
    if EWARM:
        C("L2 warm-up (speed only): this workgroup touches chunk (wg>>3)&31 of its projection half")
        A("s_lshr_b32 s31, s2, 3")
        A("s_and_b32 s31, s31, 31")
        A("s_lshl_b32 s31, s31, 8")
        for ev in (EV0, EV1):
            A(f"buffer_load_dwordx4 {V(T+4, 4)}, v{ev}, s[12:15], s31 offen")
    C("---- prologue ----")
    for j in range(-max(D, 2), 0):
        if j + D >= 0: issue_K(j + D)
        if j + 2 >= 0: issue_E(j + 2)
    for r in range(16):
        A(f"v_mov_b32 v{ACC + r}, 0")
    C("---- iterations 0..3 (peeled; iteration 0 has nothing to accumulate yet) ----")
    for i in range(U):
        emit_iter(i, True, True, vm_needed(i))
    vm_steady = vm_needed(U)
    trips = (NIT - D - U) // U
    rolled_end = U + trips * U
    if UNROLL_ALL:
        for i in range(U, rolled_end):
            emit_iter(i, True, True, vm_needed(i))
    else:
        C(f"---- rolled steady state: iterations {U}..{rolled_end - 1} ----")
        A(f"s_mov_b32 s19, {trips}")
        L("L_loop")
        for i in range(U, 2 * U):
            assert vm_needed(i) == vm_steady, (i, vm_needed(i))
            emit_iter(i, True, True, vm_steady)
        A("s_sub_u32 s19, s19, 1")
        A("s_cmp_lg_u32 s19, 0")
        A("s_cbranch_scc1 L_loop")
        for i in range(2 * U, rolled_end):
            assert vm_needed(i) == vm_steady
            for _ in range(4): queue.append(("K", i + D))
            for _ in range(2): queue.append(("E", i + 2))
    C("---- tail iterations ----")
    for i in range(rolled_end, NIT):
        emit_iter(i, (i + D) < NIT, (i + 2) < NIT, vm_needed(i))
    C("---- last accumulation (iteration 31) ----")
    A("s_waitcnt vmcnt(0) lgkmcnt(0)")
    A("s_barrier")
    emit_reads(NIT - 1)
    A("s_waitcnt lgkmcnt(0)")
    emit_mfmas()
    stamp(62)
    if MAINONLY:
        A("s_mov_b64 s[64:65], s[62:63]")
        A("s_mov_b64 s[76:77], s[62:63]")
        A("s_branch L_done")
    C("---- publish this wave's 4 tiles of partial w: quad q = m*8+t, m = 2*(v>>2)+mm, t = 2*(v&3)+tt ----")
    A("s_mov_b32 s44, s24")
    A("s_and_b32 s45, s25, 0xffff")
    A(f"s_mov_b32 s46, {WS_USED}")
    A("s_mov_b32 s47, 0x00020000")
    A("s_mov_b32 s52, s22")
    A("s_and_b32 s53, s23, 0xffff")
    A("s_mov_b32 s54, 256")
    A("s_mov_b32 s55, 0x00020000")
    A("s_lshr_b32 s26, s6, 2")
    A("s_lshl_b32 s26, s26, 14")
    A("s_and_b32 s27, s6, 3")
    A("s_lshl_b32 s27, s27, 11")
    A("s_add_u32 s26, s26, s27")
    A("s_lshl_b32 s27, s2, 15")
    A("s_add_u32 s26, s26, s27")
    A(f"v_add_u32 v{T}, s26, v{LANE16}")
    A("s_mov_b32 s27, 0x2000")
    A("s_nop 7")
    for mm in range(2):
        for tt in range(2):
            so = "s27" if mm else "0"
            A(f"buffer_store_dwordx4 {V(ACC + 4*(2*mm+tt), 4)}, v{T}, s[44:47], {so} offen offset:{tt*1024} sc1")
    stamp(76)
    C("---- arrive: every storing wave drains its stores, barrier, one lane adds to the head's counter ----")
    A("s_waitcnt vmcnt(0)")
    A("s_barrier")
    A("s_cmp_lg_u32 s6, 0")
    A("s_cbranch_scc1 L_noatom")
    A("s_lshl_b32 s26, s3, 2")
    A(f"v_mov_b32 v{T}, 1")
    A(f"v_mov_b32 v{T+1}, s26")
    A(f"v_mov_b32 v{T+2}, {FLAG}")
    A("s_mov_b64 s[40:41], exec")
    A("s_mov_b64 exec, 1")
    A(f"buffer_atomic_add v{T}, v{T+1}, s[52:55], 0 offen sc0 sc1")
    A("s_waitcnt vmcnt(0)")
    A(f"ds_write_b32 v{T+2}, v{T}")
    A("s_mov_b64 exec, s[40:41]")
    A("s_waitcnt lgkmcnt(0)")
    L("L_noatom")
    A("s_barrier")
    A(f"v_mov_b32 v{T+2}, {FLAG}")
    A(f"ds_read_b32 v{T}, v{T+2}")
    A("s_waitcnt lgkmcnt(0)")
    A("s_nop 0")
    A(f"v_readfirstlane_b32 s26, v{T}")
    stamp(64)
    A("s_nop 3")
    A("s_cmp_lg_u32 s26, 3")
    A("s_cbranch_scc1 L_done")
    C("==== finisher: partials w = 4bh + {0: K h0, 1: K h1, 2: V h0, 3: V h1} ====")
    A("s_mov_b32 s32, s20")
    A("s_and_b32 s33, s21, 0xffff")
    A(f"s_mov_b32 s34, {NREC_Q}")
    A("s_mov_b32 s35, 0x00020000")
    A("s_mov_b32 s36, s16")
    A("s_and_b32 s37, s17, 0xffff")
    A(f"s_mov_b32 s38, {NREC_Q}")
    A("s_mov_b32 s39, 0x00020000")
    for part in range(4):
        A(f"s_mov_b32 s{56+part}, {part * 32768}")
    A("s_lshl_b32 s26, s3, 17")
    A("s_lshl_b32 s27, s6, 10")
    A("s_add_u32 s26, s26, s27")
    for c in range(4):
        A(f"v_add_u32 v{T+c}, {c * 8192}, v{LANE16}")
        A(f"v_add_u32 v{T+c}, s26, v{T+c}")
    A(f"v_lshlrev_b32 v{T+4}, 4, v{C16}")
    A("s_lshl_b32 s26, s3, 8")
    A("s_lshl_b32 s27, s6, 1")
    A("s_add_u32 s26, s26, s27")
    A(f"v_add_u32 v{T+4}, s26, v{T+4}")
    for part in (0, 1):
        for c in range(4):
            A(f"buffer_load_dwordx4 {V(part * 16 + c * 4, 4)}, v{T+c}, s[44:47], s{56+part} offen sc1")
    A(f"buffer_load_ushort v64, v{T+4}, s[36:39], 0 offen")
    C("every wave's K-partial loads are queued before any V-partial load")
    A("s_barrier")
    for part in (2, 3):
        for c in range(4):
            A(f"buffer_load_dwordx4 {V(part * 16 + c * 4, 4)}, v{T+c}, s[44:47], s{56+part} offen sc1")
    A("s_waitcnt vmcnt(8)")
    stamp(78)
    C("kp = bf16(Pk0 + Pk1) ; row-score partials q[d] * kp[r][d]")
    A("v_lshlrev_b32 v64, 16, v64")
    for i in range(16):
        A(f"v_add_f32 v{i}, v{i}, v{16+i}")
    for i in range(0, 16, 2):
        A(f"v_cvt_pk_bf16_f32 v{16+i}, v{i}, v{i+1}")
    for i in range(0, 16, 2):
        A(f"v_lshlrev_b32 v{i}, 16, v{16+i}")
        A(f"v_and_b32 v{i+1}, 0xffff0000, v{16+i}")
    for i in range(16):
        A(f"v_mul_f32 v{i}, v{i}, v64")
    for n in (8, 4, 2, 1):
        for i in range(16):
            A(f"v_add_f32_dpp v{i}, v{i}, v{i} row_ror:{n} row_mask:0xf bank_mask:0xf")
    C("lanes c16 == 0: sc[v][16c+4g+j] -> LDS")
    A("s_lshl_b32 s26, s6, 8")
    A(f"s_add_u32 s26, s26, {LDSF}")
    A(f"v_lshlrev_b32 v{T+6}, 4, v{G}")
    A(f"v_add_u32 v{T+6}, s26, v{T+6}")
    A(f"v_cmp_eq_u32 s[40:41], 0, v{C16}")
    A("s_nop 3")
    A("s_mov_b64 exec, s[40:41]")
    for c in range(4):
        A(f"ds_write_b128 v{T+6}, {V(4*c, 4)} offset:{64*c}")
    A("s_mov_b64 exec, -1")
    A("s_waitcnt lgkmcnt(0)")
    A("s_barrier")
    stamp(80)
    C("lane = r: read the 8 wave partials; meanwhile vp = bf16(Pv0 + Pv1)")
    A(f"v_lshlrev_b32 v{T+7}, 2, v{LANE}")
    A(f"v_add_u32 v{T+7}, {LDSF}, v{T+7}")
    for wv in range(8):
        A(f"ds_read_b32 v{66+wv}, v{T+7} offset:{wv*256}")
    A("s_waitcnt vmcnt(0)")
    for i in range(16):
        A(f"v_add_f32 v{32+i}, v{32+i}, v{48+i}")
    for i in range(0, 16, 2):
        A(f"v_cvt_pk_bf16_f32 v{48+i}, v{32+i}, v{33+i}")
    for i in range(0, 16, 2):
        A(f"v_lshlrev_b32 v{32+i}, 16, v{48+i}")
        A(f"v_and_b32 v{33+i}, 0xffff0000, v{48+i}")
    A("s_waitcnt lgkmcnt(0)")
    C("sum in fixed order, bf16, * (Dh**-0.5), bf16")
    for wv in range(1, 8):
        A(f"v_add_f32 v66, v66, v{66+wv}")
    rne(66, T+5)
    A("v_mul_f32 v66, 0x3db504f3, v66")
    rne(66, T+5)
    C("softmax over the 64 rows (true max)")
    A("v_mov_b32 v67, v66")
    wave_reduce(67, "max")
    A("v_sub_f32 v66, v66, v67")
    A("v_mul_f32 v66, 0x3fb8aa3b, v66")
    A("v_exp_f32 v66, v66")
    A("s_nop 1")
    A("v_mov_b32 v67, v66")
    wave_reduce(67, "add")
    A("v_rcp_f32 v67, v67")
    A("s_nop 1")
    A("v_mul_f32 v66, v66, v67")
    rne(66, T+5)
    stamp(82)
    C("p -> this wave's LDS copy -> p[16c+4g+j] per lane")
    A("s_lshl_b32 s26, s6, 8")
    A(f"s_add_u32 s26, s26, {LDSP}")
    A(f"v_lshlrev_b32 v{T+7}, 2, v{LANE}")
    A(f"v_add_u32 v{T+7}, s26, v{T+7}")
    A(f"ds_write_b32 v{T+7}, v66")
    A(f"v_lshlrev_b32 v{T+6}, 4, v{G}")
    A(f"v_add_u32 v{T+6}, s26, v{T+6}")
    A("s_waitcnt lgkmcnt(0)")
    for c in range(4):
        A(f"ds_read_b128 {V(16 + 4*c, 4)}, v{T+6} offset:{64*c}")
    A(f"v_xor_b32 v{T}, 16, v{LANE}")
    A(f"v_lshlrev_b32 v{T}, 2, v{T}")
    A(f"v_xor_b32 v{T+1}, 32, v{LANE}")
    A(f"v_lshlrev_b32 v{T+1}, 2, v{T+1}")
    A("s_waitcnt lgkmcnt(0)")
    C("o[8c16+v] partial over this lane's 16 rows, then over g")
    A("v_mul_f32 v66, v16, v32")
    for i in range(1, 16):
        A(f"v_fmac_f32 v66, v{16+i}, v{32+i}")
    A(f"ds_bpermute_b32 v67, v{T}, v66")
    A("s_waitcnt lgkmcnt(0)")
    A("v_add_f32 v66, v66, v67")
    A(f"ds_bpermute_b32 v67, v{T+1}, v66")
    A("s_waitcnt lgkmcnt(0)")
    A("v_add_f32 v66, v66, v67")
    rne(66, T+5)
    A("v_lshrrev_b32 v66, 16, v66")
    C("lanes g == 0 store out[bh][8c16 + v]")
    A(f"v_cmp_eq_u32 s[40:41], 0, v{G}")
    A("s_nop 3")
    A("s_mov_b64 exec, s[40:41]")
    A(f"buffer_store_short v66, v{T+4}, s[32:35], 0 offen")
    A("s_waitcnt vmcnt(0)")
    A("s_mov_b64 exec, -1")
    L("L_done")
    if DIAG:
        stamp(68)
        A("s_memrealtime s[86:87]")
        A("s_waitcnt lgkmcnt(0)")
        A("s_cmp_lg_u32 s6, 0")
        A("s_cbranch_scc1 L_exit")
        A("s_mov_b32 s72, s24")
        A("s_and_b32 s73, s25, 0xffff")
        A("s_mov_b32 s74, 0x20000000")
        A("s_mov_b32 s75, 0x00020000")
        A("s_lshl_b32 s26, s2, 6")
        A("s_add_u32 s26, s26, 0x1000000")
        for r, sg in enumerate((60, 62, 64, 66, 68, 76)):
            A(f"v_mov_b32 v{2+r}, s{sg}")
        A("v_mov_b32 v0, s26")
        A("buffer_store_dwordx4 v[2:5], v0, s[72:75], 0 offen")
        A("buffer_store_dwordx2 v[6:7], v0, s[72:75], 0 offen offset:16")
        for r, sg in enumerate((78, 80, 82, 84, 86)):
            A(f"v_mov_b32 v{8+r}, s{sg}")
        A("buffer_store_dwordx4 v[8:11], v0, s[72:75], 0 offen offset:32")
        A("buffer_store_dword v12, v0, s[72:75], 0 offen offset:48")
        A("s_waitcnt vmcnt(0)")
    L("L_exit")
    A("s_endpgm")
    out.append(f""".section .rodata,"a"
.p2align 6
.amdhsa_kernel {NAME}_kernel
  .amdhsa_next_free_vgpr 256
  .amdhsa_next_free_sgpr 96
  .amdhsa_accum_offset 256
  .amdhsa_group_segment_fixed_size 0
  .amdhsa_kernarg_size 64
  .amdhsa_user_sgpr_count 2
  .amdhsa_user_sgpr_kernarg_segment_ptr 1
  .amdhsa_system_sgpr_workgroup_id_x 1
.end_amdhsa_kernel""")
    return "\n".join(out) + "\n"

if __name__ == "__main__":
    path = os.environ.get("OUT", f"cdna_kernels/{NAME}.s")
    open(path, "w").write(gen())
    print("wrote", path)
```
